```python
import torch

def _softmax(x, axis=-1):
    return torch.softmax(x, dim=axis)
def _gelu(x):
    return torch.nn.functional.gelu(x, approximate="tanh")
def _silu(x):
    return torch.nn.functional.silu(x)
def _sigmoid(x):
    return torch.sigmoid(x)
def _layernorm(x, axis=-1, eps=1e-5):
    m = x.mean(dim=axis, keepdim=True)
    v = x.var(dim=axis, keepdim=True, unbiased=False)
    return (x - m) / torch.sqrt(v + eps)
def _scatter_add(tgt, idx, src, axis=0):
    return tgt.clone().index_add_(axis, idx, src)
def _segment_sum(src, seg, n):
    out = torch.zeros((n,) + src.shape[1:], dtype=src.dtype)
    return out.index_add_(0, seg, src)
def _pad(x, pw):
    flat = tuple(v for pair in reversed(pw) for v in pair)
    return torch.nn.functional.pad(x, flat)

kernel_name = 'parallel_sum__mha_block_cached__glu_gated_glu__decode'

def setup_inputs():

    _w = (lambda a: (lambda t: t.to(torch.bfloat16) if t.is_floating_point() else t)(torch.as_tensor(a)))
    def _A_setup():
        B, Sq, D = 1, 1, 640
        H, Sk, Dh = 32, 4096, 192
        return {
            "x": _w((lambda *s: torch.randn(*s, dtype=torch.bfloat16) * 0.05)(B, Sq, D)),
            "k_cache": _w((lambda *s: torch.randn(*s, dtype=torch.bfloat16) * 3.2)(B, H, Sk, Dh)),
            "v_cache": _w((lambda *s: torch.randn(*s, dtype=torch.bfloat16) * 1.6)(B, H, Sk, Dh)),
            "wq": _w((lambda *s: torch.randn(*s, dtype=torch.bfloat16) * 3.2)(D, H * Dh) * (D ** -0.5)),
            "wo": _w((lambda *s: torch.randn(*s, dtype=torch.bfloat16) * 1.6)(H * Dh, D) * ((H * Dh) ** -0.5)),
        }
    _A_in = _A_setup()

    def _B_setup():
        B, S, D, F = 1, 1, 640, 1536
        return {
            "x": _w((lambda *s: torch.randn(*s, dtype=torch.bfloat16) * 0.05)(B, S, D)),
            "w_gate": _w((lambda *s: torch.randn(*s, dtype=torch.bfloat16) * 1.6)(D, F)),
            "w_up": _w((lambda *s: torch.randn(*s, dtype=torch.bfloat16) * 0.1)(D, F)),
            "w_down": _w((lambda *s: torch.randn(*s, dtype=torch.bfloat16) * 0.1)(F, D)),
        }
    _B_in = _B_setup()

    return {
        "A_x": _A_in["x"],
        "A_k_cache": _A_in["k_cache"],
        "A_v_cache": _A_in["v_cache"],
        "A_wq": _A_in["wq"],
        "A_wo": _A_in["wo"],
        "B_x": _B_in["x"],
        "B_w_gate": _B_in["w_gate"],
        "B_w_up": _B_in["w_up"],
        "B_w_down": _B_in["w_down"],
    }

def reference(A_x, A_k_cache, A_v_cache, A_wq, A_wo, B_x, B_w_gate, B_w_up, B_w_down):
    def _A_ref(x, k_cache, v_cache, wq, wo):
        B, Sq, D = x.shape
        H, Dh = 32, 192
        q = (lambda x, *d: x.permute(*d))((x @ wq).reshape(B, Sq, H, Dh), 0, 2, 1, 3)
        scores = torch.einsum("bhqd,bhkd->bhqk", q, k_cache) * (Dh ** -0.5)
        p = _softmax(scores, axis=-1)
        o = torch.einsum("bhqk,bhkd->bhqd", p, v_cache)
        return (lambda x, *d: x.permute(*d))(o, 0, 2, 1, 3).reshape(B, Sq, H * Dh) @ wo

    def _B_ref(x, w_gate, w_up, w_down):
        g = torch.einsum("bsd,df->bsf", x, w_gate)
        u = torch.einsum("bsd,df->bsf", x, w_up)
        h = _sigmoid(g) * u
        return torch.einsum("bsf,fd->bsd", h, w_down)

    x = A_x
    xn = _layernorm(x, axis=-1)
    return x + _A_ref(xn, A_k_cache, A_v_cache, A_wq, A_wo) + _B_ref(xn, B_w_gate, B_w_up, B_w_down)
```

```python
import re

TRANS = ("v_exp_f32", "v_log_f32", "v_rcp_f32", "v_rsq_f32", "v_sqrt_f32", "v_sin_f32", "v_cos_f32")

def regs_of(tok):
    tok = tok.strip()
    tok = re.sub(r"^-|^abs\(|\)$|^\|", "", tok).strip("|")
    m = re.fullmatch(r"([vsa])(\d+)", tok)
    if m: return {(m.group(1), int(m.group(2)))}
    m = re.fullmatch(r"([vsa])\[(\d+):(\d+)\]", tok)
    if m: return {(m.group(1), i) for i in range(int(m.group(2)), int(m.group(3)) + 1)}
    if tok == "vcc": return {("s", 106), ("s", 107)}
    if tok == "vcc_lo": return {("s", 106)}
    if tok == "vcc_hi": return {("s", 107)}
    if tok == "exec": return {("s", 126), ("s", 127)}
    if tok == "m0": return {("s", 124)}
    return set()

class Ins:
    def __init__(self, text):
        self.text = text
        t = text.split(";")[0].strip()
        self.label = t.endswith(":")
        self.op = t.split()[0] if t else ""
        rest = t[len(self.op):].strip()
        ops = []; depth = 0; cur = ""
        for ch in rest:
            if ch == "[": depth += 1
            if ch == "]": depth -= 1
            if ch == "," and depth == 0: ops.append(cur); cur = ""
            else: cur += ch
        if cur: ops.append(cur)
        mods = ""
        if ops:
            last = ops[-1].strip().split()
            if last:
                ops[-1] = last[0]; mods = " ".join(last[1:])
        self.ops = [o.strip() for o in ops]; self.mods = mods
        op = self.op
        self.valu = op.startswith("v_") and not op.startswith("v_mfma")
        self.mfma = op.startswith("v_mfma")
        self.dpp = ("_dpp" in op) or ("quad_perm" in mods) or ("row_" in mods)
        self.trans = any(op.startswith(x) for x in TRANS)
        self.dot = op.startswith("v_dot")
        self.vmem = op.startswith("buffer_") or op.startswith("global_")
        self.ds = op.startswith("ds_")
        self.salu = op.startswith("s_")
        self.readlane = op.startswith("v_readlane") or op.startswith("v_readfirstlane")
        self.permlane = op.startswith("v_permlane")
        self.branch = op.startswith("s_cbranch") or op == "s_branch" or op == "s_endpgm"
        self.dst = set(); self.src = set(); self.srcC = set(); self.srcAB = set(); self.storedata = set()
        R = [regs_of(o) for o in self.ops]
        if self.mfma:
            self.dst = R[0]; self.srcAB = R[1] | R[2]; self.srcC = R[3]; self.src = self.srcAB | self.srcC
        elif self.valu:
            if op.startswith("v_cmp"):
                self.dst = R[0]; self.src = set().union(*R[1:])
                if op.startswith("v_cmpx"): self.dst = self.dst | regs_of("exec")
            elif self.permlane:
                self.dst = R[0] | R[1]; self.src = R[0] | R[1]
            else:
                self.dst = R[0]; self.src = set().union(*R[1:]) if len(R) > 1 else set()
                if op.startswith("v_add_co") or op.startswith("v_addc_co") or op.startswith("v_sub_co"):
                    self.dst = R[0] | R[1]; self.src = set().union(*R[2:])
                if op.startswith("v_fmac") or op.startswith("v_dot2c") or self.dpp or op.startswith("v_writelane"):
                    self.src = self.src | R[0]
                if self.dot:
                    self.srcC = R[0] if op.startswith("v_dot2c") else R[3]
                    self.srcAB = R[1] | R[2]
                if op.startswith("v_cndmask") and len(self.ops) == 3: self.src |= regs_of("vcc")
        elif self.vmem:
            if "load" in op:
                self.dst = R[0]; self.src = set().union(*R[1:])
            else:
                self.src = set().union(*R)
                if op.startswith("buffer_"): self.storedata = R[0]
                else: self.storedata = R[1]
                if "atomic" in op and "sc0" in mods: self.dst = R[0]
        elif self.ds:
            if "read" in op or "_rtn" in op or "permute" in op or "swizzle" in op:
                self.dst = R[0]; self.src = set().union(*R[1:]) if len(R) > 1 else set()
            else:
                self.src = set().union(*R) if R else set()
        elif self.salu:
            if op.startswith("s_cmp") or op in ("s_waitcnt", "s_barrier", "s_nop", "s_sleep", "s_setprio") or self.branch:
                self.src = set().union(*R) if R else set()
            else:
                self.dst = R[0] if R else set(); self.src = set().union(*R[1:]) if len(R) > 1 else set()
                if "saveexec" in op: self.dst = self.dst | regs_of("exec")
    def states(self):
        if self.op == "s_nop": return int(self.ops[0], 0) + 1
        return 1

def isv(rs): return {r for r in rs if r[0] in "va"}
def iss(rs): return {r for r in rs if r[0] == "s"}

def need(p, c):
    n = 0
    if p.valu:
        w = isv(p.dst); ws = iss(p.dst)
        if c.valu and c.dpp and (w & c.src): n = max(n, 2)
        if c.readlane and (w & c.src): n = max(n, 1)
        if c.permlane and (w & c.src): n = max(n, 2)
        if c.mfma and (w & c.src): n = max(n, 3 if p.dot else 2)
        if p.trans and (c.valu or c.mfma) and (w & c.src): n = max(n, 1)
        if p.trans and (c.vmem or c.ds) and (w & c.src): n = max(n, 1)
        if ws:
            if c.valu and (ws & c.src): n = max(n, 4 if (c.op.startswith("v_readlane") or c.op.startswith("v_writelane")) else 2)
            if c.vmem and (ws & c.src): n = max(n, 5)
            if (("s", 126) in ws):
                if c.valu and c.dpp: n = max(n, 5)
                if c.readlane or c.permlane or c.mfma: n = max(n, 4)
            if c.salu and (ws & c.src): n = max(n, 1)
        if p.dot:
            same = (c.op == p.op)
            if c.valu or c.vmem or c.ds or c.mfma:
                if same and c.dot:
                    if w & c.srcAB: n = max(n, 3)
                else:
                    if (w & c.src) or (w & c.dst): n = max(n, 3)
    if p.mfma:
        passes = 4 if "16x16x32" in p.op else (8 if ("32x32x16" in p.op or "16x16x4_f32" in p.op) else 16)
        xdl = "_f32_16x16x4_f32" not in p.op
        D = p.dst
        raw = {4: 8, 8: 12, 16: 20}[passes] if xdl else {4: 6, 8: 10, 16: 18}[passes]
        if c.mfma:
            if D & c.srcAB: n = max(n, raw)
            if D & c.srcC:
                if not (c.srcC == D and c.op == p.op): n = max(n, {4: 6, 8: 10, 16: 18}[passes])
            if (D & c.dst) and not (c.dst == D and c.op == p.op): n = max(n, raw)
        elif c.valu or c.vmem or c.ds:
            if (D & c.src) or (D & c.dst): n = max(n, raw)
        if c.valu and (p.srcC & c.dst): n = max(n, {4: 3, 8: 7, 16: 15}[passes])
    if p.vmem and p.storedata and len(p.storedata) >= 3:
        if (c.valu or c.mfma) and (p.storedata & c.dst): n = max(n, 2)
        elif (p.storedata & c.dst): n = max(n, 1)
    if p.salu and (("s", 124) in p.dst) and (c.ds or c.vmem): n = max(n, 1)
    return n

class Asm:
    def __init__(self):
        self.lines = []
    def __call__(self, text):
        for t in text.strip().split("\n"):
            t = t.strip()
            if t: self.lines.append(t)
    def raw(self, t): self.lines.append("\x00" + t)
    def finish(self, window=24):
        out = []; hist = []
        npad = 0
        for t in self.lines:
            if t.startswith("\x00"):
                out.append(t[1:]); continue
            if t.startswith(";") or t.startswith("."):
                out.append(t); continue
            ins = Ins(t)
            if ins.label:
                out.append(t); continue
            req = 0; dist = 0
            for p in reversed(hist[-window:]):
                n = need(p, ins)
                if n - dist > req: req = n - dist
                dist += p.states()
                if dist > 24: break
            while req > 0:
                k = min(req, 16)
                nop = Ins(f"s_nop {k-1}"); out.append("    " + nop.text); hist.append(nop); req -= k; npad += 1
            out.append("    " + t); hist.append(ins)
        self.npad = npad
        return "\n".join(out) + "\n"
```

```python
import sys, argparse
from asmlib import Asm
KN = "parallel_sum__mha_block_cached__glu_gated_glu__decode_kernel"
HDR = open("parallel_sum__mha_block_cached__glu_gated_glu__decode.s.ref").read().split("; Override launch geometry")[0]

PUB = 0x000000
INB = 0x100000
INY = 0x200000
STAMP = 0x400000
LQ, LH, LCNT, LO = 0, 384, 448, 512
SPIN = 1 << 16

def gen(nt=True, D=6, nv1=9, stamps=False, qk_issue=1, ntw=True):
    a = Asm()
    KVF = " nt" if nt else ""
    WF = " nt" if ntw else ""
    a.raw(HDR.rstrip())
    a.raw("; @launch grid=(256,1,1) block=(768,1,1) lds=16384")
    a.raw('.amdgcn_target "amdgcn-amd-amdhsa--gfx950"')
    a.raw(".text"); a.raw(f".globl {KN}"); a.raw(".p2align 8"); a.raw(f".type {KN},@function"); a.raw(f"{KN}:")
    nst = [0]
    def stamp(i):
        if stamps: a(f"s_memrealtime s[{70+2*i}:{71+2*i}]")
    def dump_stamps(n=12):
        if not stamps: return
        a("s_mov_b64 exec, 1")
        a("s_waitcnt lgkmcnt(0)")
        a("s_mul_i32 s52, s2, 12"); a("s_add_u32 s52, s52, s3"); a("s_lshl_b32 s52, s52, 7"); a(f"s_add_u32 s52, s52, {STAMP}")
        a("v_mov_b32 v1, 0")
        for i in range(n):
            a(f"v_mov_b32 v2, s{70+2*i}"); a(f"v_mov_b32 v3, s{71+2*i}")
            a(f"buffer_store_dwordx2 v[2:3], v1, s[48:51], s52 offen offset:{8*i}")
    def srd(base, karg, size):
        a(f"s_load_dwordx2 s[{base}:{base+1}], s[0:1], {karg}")
        a(f"s_mov_b32 s{base+2}, {size}"); a(f"s_mov_b32 s{base+3}, 0x20000")
    X, K, V, WQ, WO, GA, UP, DN, OUT, DBG, WS = [f"s[{8+4*i}:{11+4*i}]" for i in range(11)]

    a("s_cmp_ge_u32 s2, 256"); a("s_cbranch_scc1 L_end")
    if stamps:
        for i in range(12): a(f"s_mov_b64 s[{70+2*i}:{71+2*i}], 0")
    stamp(0)
    a("v_lshrrev_b32 v1, 6, v0")
    a("v_and_b32 v0, 63, v0")
    a("v_readfirstlane_b32 s3, v1")
    srd(48, 88, 0x10000000)
    a("s_and_b32 s4, s2, 7"); a("s_lshl_b32 s4, s4, 2"); a("s_lshr_b32 s5, s2, 6"); a("s_add_u32 s4, s4, s5")
    a("s_bfe_u32 s5, s2, 0x30003")
    a("s_lshl_b32 s6, s4, 3"); a("s_add_u32 s6, s6, s5")
    a("v_lshrrev_b32 v1, 3, v0")
    a("v_and_b32 v2, 7, v0")
    a("s_cmp_ge_u32 s3, 4"); a("s_cbranch_scc1 L_stream")

    def masks(M, t0, t1):
        a(f"v_and_b32 v{t0}, 1, v2"); a(f"v_lshlrev_b32 v{t0}, 4, v{t0}")
        a(f"v_mov_b32 v{t1}, 0xffff"); a(f"v_lshlrev_b32 v{t0}, v{t0}, v{t1}")
        a(f"v_lshrrev_b32 v{t1}, 1, v2")
        for r in range(4):
            a(f"v_cmp_eq_u32 vcc, {r}, v{t1}")
            a(f"v_cndmask_b32 v{M+r}, 0, v{t0}, vcc")
    def wave_reduce(op, v, full=True):
        if full:
            a(f"{op}_dpp v{v}, v{v}, v{v} quad_perm:[1,0,3,2] row_mask:0xf bank_mask:0xf")
            a(f"{op}_dpp v{v}, v{v}, v{v} quad_perm:[2,3,0,1] row_mask:0xf bank_mask:0xf")
            a(f"{op}_dpp v{v}, v{v}, v{v} row_half_mirror row_mask:0xf bank_mask:0xf")
        a(f"{op}_dpp v{v}, v{v}, v{v} row_ror:8 row_mask:0xf bank_mask:0xf")
        a(f"{op}_dpp v{v}, v{v}, v{v} row_bcast:15 row_mask:0xa bank_mask:0xf")
        a(f"{op}_dpp v{v}, v{v}, v{v} row_bcast:31 row_mask:0xc bank_mask:0xf")

    a("s_setprio 3")
    srd(8, 0, 1280)
    srd(44, 80, 256)
    srd(32, 56, 1966080)
    a("s_cmp_eq_u32 s3, 3"); a("s_cbranch_scc1 L_h3pre")
    srd(20, 24, 7864320)
    a("v_mul_u32_u24 v3, 122880, v1"); a("v_lshl_add_u32 v3, v2, 4, v3")
    a("s_mul_i32 s52, s5, 983040"); a("s_mul_i32 s53, s4, 384"); a("s_add_u32 s52, s52, s53")
    a("s_lshl_b32 s53, s3, 7"); a("s_add_u32 s52, s52, s53")
    a("s_movk_i32 s54, 12288")
    a("s_branch L_hld")
    a("L_h3pre:")
    srd(20, 48, 1966080)
    a("v_mul_u32_u24 v3, 30720, v1"); a("v_lshl_add_u32 v3, v2, 4, v3")
    a("v_cmp_lt_u32 vcc, 5, v2")
    a("v_mov_b32 v4, 0x40000000")
    a("v_cndmask_b32 v3, v3, v4, vcc")
    a("s_mul_i32 s52, s5, 245760"); a("s_mul_i32 s53, s4, 96"); a("s_add_u32 s52, s52, s53")
    a("s_movk_i32 s54, 3072")
    a("L_hld:")
    a("v_mul_u32_u24 v4, 20, v0")
    a("v_mul_u32_u24 v5, 20, v1")
    a("s_mul_i32 s55, s5, 160")
    a("s_waitcnt lgkmcnt(0)")
    XA, XB = 8, 14
    a(f"buffer_load_dwordx4 v[8:11], v4, {X}, 0 offen")
    a(f"buffer_load_dword v12, v4, {X}, 0 offen offset:16")
    a(f"buffer_load_dwordx4 v[14:17], v5, {X}, s55 offen")
    a(f"buffer_load_dword v18, v5, {X}, s55 offen offset:16")
    WB = 64
    a("s_mov_b32 s53, s52")
    for r in range(10):
        a(f"buffer_load_dwordx4 v[{WB+4*r}:{WB+4*r+3}], v3, {WQ}, s53 offen{WF}")
        if r < 9: a("s_add_u32 s53, s53, s54")
    a("s_cmp_lg_u32 s3, 3"); a("s_cbranch_scc1 L_hinit")
    for r in range(10):
        a(f"buffer_load_dwordx4 v[{WB+40+4*r}:{WB+40+4*r+3}], v3, {UP}, s52 offen{WF}")
        if r < 9: a("s_add_u32 s52, s52, s54")
    a("s_branch L_hb0")
    a("L_hinit:")
    a("v_mov_b32 v20, -1"); a("v_mov_b32 v21, -1"); a("v_mov_b32 v22, -1"); a("v_mov_b32 v23, -1")
    a("v_lshlrev_b32 v6, 4, v0")
    a("s_cmp_eq_u32 s3, 1"); a("s_cbranch_scc1 L_hinit1")
    a("s_cmp_eq_u32 s3, 2"); a("s_cbranch_scc1 L_hinit2")
    a("v_mov_b32 v7, 0"); a(f"v_mov_b32 v24, {LCNT}")
    a("ds_write_b32 v24, v7")
    a("s_waitcnt lgkmcnt(0)")
    a("s_branch L_hb0")
    a("L_hinit1:")
    a(f"s_lshl_b32 s53, s6, 11"); a(f"s_add_u32 s53, s53, {INB}")
    a(f"buffer_store_dwordx4 v[20:23], v6, {WS}, s53 offen sc1")
    a(f"buffer_store_dwordx4 v[20:23], v6, {WS}, s53 offen offset:1024 sc1")
    a("s_branch L_hb0")
    a("L_hinit2:")
    a(f"s_lshl_b32 s53, s2, 12"); a(f"s_add_u32 s53, s53, {INY}")
    for t in range(4):
        a(f"buffer_store_dwordx4 v[20:23], v6, {WS}, s53 offen offset:{1024*t} sc1")
    a("L_hb0:")
    a("s_barrier")
    stamp(1)
    masks(24, 6, 7)
    a("s_waitcnt vmcnt(10)")
    for i in range(5):
        a(f"v_lshlrev_b32 v{28+2*i}, 16, v{8+i}"); a(f"v_and_b32 v{29+2*i}, 0xffff0000, v{8+i}")
    a("v_add_f32 v38, v28, v29")
    for i in range(2, 10): a(f"v_add_f32 v38, v38, v{28+i}")
    wave_reduce("v_add_f32", 38)
    a("v_readlane_b32 s56, v38, 63")
    a("v_mov_b32 v39, 0x3acccccd")
    a("v_mul_f32 v39, s56, v39")
    for i in range(10): a(f"v_sub_f32 v{28+i}, v{28+i}, v39")
    a("v_mul_f32 v38, v28, v28")
    for i in range(1, 10): a(f"v_fmac_f32 v38, v{28+i}, v{28+i}")
    wave_reduce("v_add_f32", 38)
    a("v_readlane_b32 s56, v38, 63")
    a("v_mov_b32 v38, 0x3acccccd")
    a("v_mul_f32 v38, s56, v38")
    a("v_cvt_pk_bf16_f32 v38, v38, v39")
    a("v_and_b32 v39, 0xffff0000, v38")
    a("v_lshlrev_b32 v38, 16, v38")
    a("v_add_f32 v38, 0x3727c5ac, v38")
    a("v_cvt_pk_bf16_f32 v38, v38, v38")
    a("v_lshlrev_b32 v38, 16, v38")
    a("v_sqrt_f32 v38, v38")
    a("v_cvt_pk_bf16_f32 v38, v38, v38")
    a("v_lshlrev_b32 v38, 16, v38")
    a("v_rcp_f32 v38, v38")
    for i in range(5):
        a(f"v_lshlrev_b32 v{28+2*i}, 16, v{14+i}"); a(f"v_and_b32 v{29+2*i}, 0xffff0000, v{14+i}")
    for i in range(10): a(f"v_sub_f32 v{28+i}, v{28+i}, v39")
    for i in range(5):
        a(f"v_cvt_pk_bf16_f32 v{8+i}, v{28+2*i}, v{29+2*i}")
    for i in range(5):
        a(f"v_lshlrev_b32 v{28+2*i}, 16, v{8+i}"); a(f"v_and_b32 v{29+2*i}, 0xffff0000, v{8+i}")
    for i in range(10): a(f"v_mul_f32 v{28+i}, v{28+i}, v38")
    for i in range(10): a(f"v_cvt_pk_bf16_f32 v{28+i}, v{28+i}, v{28+i}")
    stamp(2)
    a("s_waitcnt vmcnt(0)")
    stamp(3)
    a("s_cmp_eq_u32 s3, 3"); a("s_cbranch_scc1 L_hm3")
    for r in range(10):
        T = 48 + 4 * (r & 1)
        for i in range(4): a(f"v_and_b32 v{T+i}, v{28+r}, v{24+i}")
        a(f"v_mfma_f32_16x16x32_bf16 v[40:43], v[{T}:{T+3}], v[{WB+4*r}:{WB+4*r+3}], " + ("0" if r == 0 else "v[40:43]"))
    def fixup(acc, z):
        for i in range(4): a(f"v_permlane32_swap_b32 v{acc+i}, v{z+i}")
        for i in range(4): a(f"v_add_f32_dpp v{acc+i}, v{z+i}, v{acc+i} row_ror:8 row_mask:0xf bank_mask:0xf")
    def pubaddr():
        a("v_and_b32 v6, 15, v0"); a("v_lshlrev_b32 v6, 5, v6"); a("v_and_b32 v7, 16, v0"); a("v_add_u32 v6, v6, v7")
        a("s_lshl_b32 s53, s6, 11")
    pubaddr()
    a("s_lshl_b32 s54, s3, 8"); a("s_add_u32 s53, s53, s54")
    fixup(40, 56)
    a("s_mov_b64 exec, 0x00ff00ff")
    a(f"buffer_store_dwordx4 v[40:43], v6, {WS}, s53 offen sc1")
    a("s_branch L_hpub")
    a("L_hm3:")
    for r in range(10):
        T = 48 + 4 * (r & 1)
        for i in range(4): a(f"v_and_b32 v{T+i}, v{28+r}, v{24+i}")
        a(f"v_mfma_f32_16x16x32_bf16 v[40:43], v[{T}:{T+3}], v[{WB+4*r}:{WB+4*r+3}], " + ("0" if r == 0 else "v[40:43]"))
        a(f"v_mfma_f32_16x16x32_bf16 v[44:47], v[{T}:{T+3}], v[{WB+40+4*r}:{WB+40+4*r+3}], " + ("0" if r == 0 else "v[44:47]"))
    pubaddr()
    fixup(40, 56); fixup(44, 60)
    a("s_mov_b64 exec, 0x003f003f")
    a(f"buffer_store_dwordx4 v[40:43], v6, {WS}, s53 offen offset:768 sc1")
    a(f"buffer_store_dwordx4 v[44:47], v6, {WS}, s53 offen offset:960 sc1")
    a("L_hpub:")
    a("s_mov_b64 exec, 1")
    a("v_mov_b32 v7, 1"); a(f"v_mov_b32 v6, {LCNT}")
    a("s_waitcnt vmcnt(0)")
    stamp(4)
    a("ds_add_rtn_u32 v8, v6, v7")
    a("v_mov_b32 v6, s6")
    a("s_waitcnt lgkmcnt(0)")
    a("v_readfirstlane_b32 s53, v8")
    a("s_cmp_lg_u32 s53, 3"); a("s_cbranch_scc1 L_hnoflag")
    a(f"buffer_store_byte v7, v6, {DBG}, 0 offen sc1")
    a("L_hnoflag:")
    a("s_mov_b64 exec, -1")
    a("s_cmp_eq_u32 s3, 1"); a("s_cbranch_scc1 L_h1")
    a("s_cmp_lg_u32 s3, 0"); a("s_cbranch_scc1 L_fin")
    a("s_lshl_b32 s53, s4, 3"); a("v_mov_b32 v6, s53")
    a("v_and_b32 v7, 3, v0"); a("v_lshlrev_b32 v7, 11, v7"); a("v_lshrrev_b32 v9, 2, v0"); a("v_lshl_add_u32 v7, v9, 4, v7")
    a("v_lshlrev_b32 v9, 3, v9")
    a("v_lshlrev_b32 v10, 11, v2"); a("v_lshl_add_u32 v10, v1, 2, v10")
    a("s_lshl_b32 s54, s4, 14"); a("s_add_u32 s55, s54, 8192")
    a("s_mul_i32 s56, s5, 24"); a("s_add_u32 s56, s56, s54")
    a(f"s_mov_b32 s57, {SPIN}")
    a("s_mov_b32 s58, 0x01010101")
    a("L_pollq:")
    a(f"buffer_load_dwordx2 v[12:13], v6, {DBG}, 0 offen sc1")
    a("s_sub_u32 s57, s57, 1"); a("s_cbranch_scc1 L_pollq_done")
    a("s_waitcnt vmcnt(0)")
    a("v_and_b32 v12, v12, v13")
    a("v_readfirstlane_b32 s53, v12")
    a("s_cmp_eq_u32 s53, s58"); a("s_cbranch_scc1 L_pollq_done")
    a("s_sleep 4")
    a("s_branch L_pollq")
    a("L_pollq_done:")
    stamp(5)
    for k in range(3):
        a(f"buffer_load_dwordx4 v[{64+8*k}:{67+8*k}], v7, {WS}, s54 offen offset:{256*k} sc1")
        a(f"buffer_load_dwordx4 v[{68+8*k}:{71+8*k}], v7, {WS}, s55 offen offset:{256*k} sc1")
    a(f"buffer_load_dword v12, v10, {WS}, s56 offen offset:768 sc1")
    a(f"buffer_load_dword v13, v10, {WS}, s56 offen offset:960 sc1")
    for k in range(3):
        a(f"s_waitcnt vmcnt({2*(2-k)+2})")
        b = 64 + 8 * k
        for i in range(4): a(f"v_add_f32 v{b+i}, v{b+i}, v{b+4+i}")
        for i in range(4): a(f"v_add_f32_dpp v{b+i}, v{b+i}, v{b+i} quad_perm:[1,0,3,2] row_mask:0xf bank_mask:0xf")
        for i in range(4): a(f"v_add_f32_dpp v{b+i}, v{b+i}, v{b+i} quad_perm:[2,3,0,1] row_mask:0xf bank_mask:0xf")
        a(f"v_cvt_pk_bf16_f32 v{b}, v{b}, v{b+1}"); a(f"v_cvt_pk_bf16_f32 v{b+1}, v{b+2}, v{b+3}")
        a(f"ds_write_b64 v9, v[{b}:{b+1}] offset:{LQ+128*k}")
    a("s_waitcnt vmcnt(0)")
    for m in ("quad_perm:[1,0,3,2]", "quad_perm:[2,3,0,1]", "row_half_mirror"):
        a(f"v_add_f32_dpp v12, v12, v12 {m} row_mask:0xf bank_mask:0xf")
        a(f"v_add_f32_dpp v13, v13, v13 {m} row_mask:0xf bank_mask:0xf")
    a("v_cvt_pk_bf16_f32 v12, v12, v13")
    a("v_and_b32 v13, 0xffff0000, v12")
    a("v_lshlrev_b32 v12, 16, v12")
    a("v_mul_f32 v12, 0xbfb8aa3b, v12")
    a("v_exp_f32 v12, v12")
    a("v_add_f32 v12, 1.0, v12")
    a("v_rcp_f32 v12, v12")
    a("v_cvt_pk_bf16_f32 v12, v12, v12")
    a("v_lshlrev_b32 v12, 16, v12")
    a("v_mul_f32 v12, v12, v13")
    a("v_cvt_pk_bf16_f32 v12, v12, v12")
    a("v_cmp_gt_u32 vcc, 6, v1")
    a("v_cndmask_b32 v12, 0, v12, vcc")
    a("v_lshlrev_b32 v13, 2, v1")
    a(f"ds_write_b32 v13, v12 offset:{LH}")
    a("s_waitcnt lgkmcnt(0)")
    stamp(6)
    a("s_barrier")
    stamp(7)
    a("v_lshlrev_b32 v6, 3, v0")
    a(f"s_lshl_b32 s53, s6, 11"); a(f"s_add_u32 s53, s53, {INB+1024}")
    a(f"s_mov_b32 s57, {SPIN}")
    a("v_mul_u32_u24 v7, 43, v0"); a("v_lshrrev_b32 v7, 8, v7")
    a("v_mul_u32_u24 v8, 6, v7"); a("v_sub_u32 v8, v0, v8")
    a("v_lshlrev_b32 v7, 11, v7"); a("v_lshl_add_u32 v7, v8, 4, v7")
    a("s_lshl_b32 s54, s4, 14"); a("s_lshl_b32 s55, s5, 7"); a("s_add_u32 s54, s54, s55"); a(f"s_add_u32 s54, s54, {INB}")
    a("v_lshlrev_b32 v9, 4, v0")
    a("L_pollml:")
    a(f"buffer_load_dwordx2 v[12:13], v6, {WS}, s53 offen sc1")
    a("s_sub_u32 s57, s57, 1"); a("s_cbranch_scc1 L_pollml_done")
    a("s_waitcnt vmcnt(0)")
    a("v_max_u32 v14, v12, v13")
    a("v_cmp_eq_u32 vcc, -1, v14")
    a("s_cbranch_vccz L_pollml_done")
    a("s_sleep 8")
    a("s_branch L_pollml")
    a("L_pollml_done:")
    a("s_waitcnt vmcnt(0)")
    stamp(8)
    a("v_mov_b32 v14, v12")
    wave_reduce("v_max_f32", 14)
    a("v_readlane_b32 s56, v14, 63")
    a("v_subrev_f32 v12, s56, v12")
    a("v_mul_f32 v12, 0x3fb8aa3b, v12")
    a("v_exp_f32 v12, v12")
    a("v_mul_f32 v13, v13, v12")
    wave_reduce("v_add_f32", 13)
    a("v_rcp_f32 v13, v13")
    a("v_readlane_b32 s56, v13, 63")
    a("v_mul_f32 v12, s56, v12")
    a("s_lshl_b32 s55, s5, 3")
    for w in range(8):
        a(f"v_readlane_b32 s{20+2*w}, v12, s55")
        a("s_add_u32 s55, s55, 1")
    a("s_barrier")
    stamp(9)
    for r in range(16):
        a(f"ds_read_b128 v[{64+4*r}:{67+4*r}], v9 offset:{LO+768*r}")
    for w in range(8):
        a(f"s_waitcnt lgkmcnt({14-2*w})")
        b = 64 + 8 * w
        a(f"v_pk_add_f32 v[{b}:{b+1}], v[{b}:{b+1}], v[{b+4}:{b+5}]")
        a(f"v_pk_add_f32 v[{b+2}:{b+3}], v[{b+2}:{b+3}], v[{b+6}:{b+7}]")
        if w == 0:
            a(f"v_pk_mul_f32 v[60:61], v[{b}:{b+1}], s[20:21] op_sel_hi:[1,0]")
            a(f"v_pk_mul_f32 v[62:63], v[{b+2}:{b+3}], s[20:21] op_sel_hi:[1,0]")
        else:
            a(f"v_pk_fma_f32 v[60:61], v[{b}:{b+1}], s[{20+2*w}:{21+2*w}], v[60:61] op_sel_hi:[1,0,1]")
            a(f"v_pk_fma_f32 v[62:63], v[{b+2}:{b+3}], s[{20+2*w}:{21+2*w}], v[62:63] op_sel_hi:[1,0,1]")
    a("s_mov_b32 exec_hi, 0xffff")
    a(f"buffer_store_dwordx4 v[60:63], v7, {WS}, s54 offen sc1")
    stamp(10)
    a("s_branch L_fin")

    a("L_h1:")
    srd(40, 72, 1280)
    a("s_barrier")
    a("v_lshlrev_b32 v6, 2, v0")
    a(f"s_mov_b32 s57, {SPIN}")
    a("s_mov_b32 s58, 0x01010101")
    a("L_pollall:")
    a(f"buffer_load_dword v12, v6, {DBG}, 0 offen sc1")
    a("s_sub_u32 s57, s57, 1"); a("s_cbranch_scc1 L_pollall_done")
    a("s_waitcnt vmcnt(0)")
    a("v_cmp_ne_u32 vcc, s58, v12")
    a("s_cbranch_vccz L_pollall_done")
    a("s_sleep 8")
    a("s_branch L_pollall")
    a("L_pollall_done:")
    a("s_cmp_ge_u32 s2, 160"); a("s_cbranch_scc1 L_fin")
    a("v_bfe_u32 v7, v0, 2, 1"); a("v_bfe_u32 v8, v0, 3, 1"); a("v_lshl_add_u32 v7, v7, 1, v8")
    a("v_lshlrev_b32 v7, 1, v7")
    a("s_lshl_b32 s54, s2, 3")
    a(f"buffer_load_ushort v9, v7, {X}, s54 offen")
    a("v_lshlrev_b32 v6, 4, v0")
    a(f"s_lshl_b32 s53, s2, 12"); a(f"s_add_u32 s53, s53, {INY}")
    a(f"s_mov_b32 s57, {SPIN}")
    a("s_waitcnt vmcnt(0) lgkmcnt(0)")
    a("v_lshlrev_b32 v9, 16, v9")
    a("s_barrier")
    stamp(9)
    a("L_polly:")
    for t in range(4):
        a(f"buffer_load_dwordx4 v[{64+4*t}:{67+4*t}], v6, {WS}, s53 offen offset:{1024*t} sc1")
    a("s_sub_u32 s57, s57, 1"); a("s_cbranch_scc1 L_polly_done")
    a("s_waitcnt vmcnt(3)")
    a("v_max3_u32 v14, v64, v65, v66")
    a("s_waitcnt vmcnt(2)")
    a("v_max3_u32 v14, v14, v67, v68"); a("v_max3_u32 v15, v69, v70, v71")
    a("s_waitcnt vmcnt(1)")
    a("v_max3_u32 v14, v14, v72, v73"); a("v_max3_u32 v15, v15, v74, v75")
    a("s_waitcnt vmcnt(0)")
    a("v_max3_u32 v14, v14, v76, v77"); a("v_max3_u32 v15, v15, v78, v79")
    a("v_max_u32 v14, v14, v15")
    a("v_cmp_eq_u32 vcc, -1, v14")
    a("s_cbranch_vccnz L_polly")
    a("L_polly_done:")
    a("s_waitcnt vmcnt(0)")
    stamp(10)
    a("v_pk_add_f32 v[64:65], v[64:65], v[68:69]"); a("v_pk_add_f32 v[66:67], v[66:67], v[70:71]")
    a("v_pk_add_f32 v[72:73], v[72:73], v[76:77]"); a("v_pk_add_f32 v[74:75], v[74:75], v[78:79]")
    a("v_pk_add_f32 v[64:65], v[64:65], v[72:73]"); a("v_pk_add_f32 v[66:67], v[66:67], v[74:75]")
    a("v_add_f32_dpp v68, v64, v64 row_ror:8 row_mask:0xf bank_mask:0x3")
    a("v_add_f32_dpp v69, v66, v66 row_ror:8 row_mask:0xf bank_mask:0x3")
    a("v_add_f32_dpp v68, v65, v65 row_ror:8 row_mask:0xf bank_mask:0xc")
    a("v_add_f32_dpp v69, v67, v67 row_ror:8 row_mask:0xf bank_mask:0xc")
    a("v_add_f32_dpp v70, v68, v68 row_half_mirror row_mask:0xf bank_mask:0x5")
    a("v_add_f32_dpp v70, v69, v69 row_half_mirror row_mask:0xf bank_mask:0xa")
    a("v_add_f32_dpp v70, v70, v70 quad_perm:[1,0,3,2] row_mask:0xf bank_mask:0xf")
    a("v_add_f32_dpp v70, v70, v70 quad_perm:[2,3,0,1] row_mask:0xf bank_mask:0xf")
    a("v_mov_b32 v71, v70")
    a("v_permlane32_swap_b32 v71, v72")
    a("v_add_f32 v70, v70, v72")
    a("v_mov_b32 v71, v70")
    a("v_permlane16_swap_b32 v71, v72")
    a("v_add_f32 v70, v70, v72")
    a("v_add_f32 v70, v70, v9")
    a("v_cvt_pk_bf16_f32 v70, v70, v70")
    a("s_mov_b64 exec, 0x1111")
    a(f"buffer_store_short v70, v7, {OUT}, s54 offen")
    stamp(11)
    a("s_branch L_fin")

    a("L_stream:")
    srd(12, 8, 50331648); srd(16, 16, 50331648); srd(24, 32, 7864320); srd(36, 64, 1966080)
    a("s_sub_u32 s7, s3, 4")
    a("v_mul_u32_u24 v3, 384, v1"); a("v_lshl_add_u32 v3, v2, 4, v3")
    a("s_mul_i32 s52, s6, 196608"); a("s_mul_i32 s53, s7, 24576"); a("s_add_u32 s52, s52, s53")
    a("s_add_u32 s53, s52, 6144"); a("s_add_u32 s54, s52, 12288"); a("s_add_u32 s55, s52, 18432")
    M = 4; S = 8; Q = 16; ACC = 16; POOL = 36
    NSLOT = (168 - POOL) // 4
    assert 24 + nv1 <= NSLOT
    def slot(i): return f"v[{POOL+4*i}:{POOL+4*i+3}]"
    def kvoff(i):
        T, k = divmod(i, 3)
        return f"s{52 + T//2}", (T & 1) * 3072 + 128 * k
    a("s_waitcnt lgkmcnt(0)")
    a("s_barrier")
    stamp(1)
    ops = []
    def issue(name, text):
        ops.append(name); a(text)
    def wait_for(name):
        n = len(ops) - 1 - ops.index(name)
        a(f"s_waitcnt vmcnt({n})")
    def throttle():
        if len(ops) >= D: a(f"s_waitcnt vmcnt({D-1})")
    vslot = {}
    for i in range(24):
        if i < nv1: vslot[i] = 24 + i
        else: vslot[i] = i - nv1
    def ldK(i):
        so, off = kvoff(i); issue(f"K{i}", f"buffer_load_dwordx4 {slot(i)}, v3, {K}, {so} offen offset:{off}{KVF}")
    def ldV(i):
        so, off = kvoff(i); issue(f"V{i}", f"buffer_load_dwordx4 {slot(vslot[i])}, v3, {V}, {so} offen offset:{off}{KVF}")
    for i in range(D): ldK(i)
    masks(M, 28, 29)
    for T in range(8): a(f"v_mov_b32 v{S+T}, 0")
    a("v_lshlrev_b32 v28, 4, v2")
    a("v_lshlrev_b32 v29, 11, v0")
    a("s_lshl_b32 s56, s4, 14"); a("s_lshl_b32 s57, s5, 6"); a("s_add_u32 s56, s56, s57"); a("s_lshl_b32 s57, s7, 3"); a("s_add_u32 s56, s56, s57")
    a(f"s_add_u32 s56, s56, {INB+1024}")
    a("v_lshrrev_b32 v30, 5, v0"); a("v_mul_u32_u24 v30, 768, v30"); a("v_lshl_add_u32 v30, v2, 5, v30")
    a("v_and_b32 v31, 16, v0"); a("v_add_u32 v30, v30, v31")
    a("s_mul_i32 s57, s7, 1536"); a("v_add_u32 v30, s57, v30")
    a("v_lshrrev_b32 v34, 4, v0"); a("v_and_b32 v35, 15, v0"); a("v_lshlrev_b32 v35, 4, v35")
    a("v_mul_u32_u24 v31, 7680, v34"); a("v_add_u32 v31, v31, v35")
    a("v_mul_u32_u24 v32, 1280, v34"); a("v_add_u32 v32, v32, v35")
    a("v_add_u32 v33, 5120, v32")
    a("v_mov_b32 v35, 0x40000000"); a("v_cmp_lt_u32 vcc, 31, v0"); a("v_cndmask_b32 v33, v33, v35, vcc")
    a("v_lshlrev_b32 v34, 2, v34")
    a("s_mul_i32 s58, s6, 30720"); a("s_lshl_b32 s57, s7, 8"); a("s_add_u32 s58, s58, s57"); a("s_add_u32 s59, s58, 3840")
    a("s_mul_i32 s60, s6, 7680"); a("s_add_u32 s60, s60, s57")
    for i in range(D, 24): throttle(); ldK(i)
    for i in range(nv1): throttle(); ldV(i)
    stamp(2)
    a("s_barrier")
    stamp(3)
    for k in range(3): a(f"ds_read_b128 v[{Q+4*k}:{Q+4*k+3}], v28 offset:{LQ+128*k}")
    wait_for("K23")
    a("s_waitcnt lgkmcnt(0)")
    nextv = nv1
    DP = ("quad_perm:[1,0,3,2]", "quad_perm:[2,3,0,1]", "row_half_mirror")
    def dppstep(T, st): a(f"v_add_f32_dpp v{S+T}, v{S+T}, v{S+T} {DP[st]} row_mask:0xf bank_mask:0xf")
    for T in range(8):
        for k in range(3):
            for r in range(4):
                a(f"v_dot2c_f32_bf16 v{S+T}, v{POOL+4*(3*T+k)+r}, v{Q+4*k+r}")
            if T > 0: dppstep(T - 1, k)
        for _ in range(qk_issue):
            if nextv < 24 and vslot[nextv] < 3 * (T + 1): ldV(nextv); nextv += 1
    for st in range(3): dppstep(7, st)
    for T in range(0, 8, 2): a(f"v_cvt_pk_bf16_f32 v{Q+T}, v{S+T}, v{S+T+1}")
    for T in range(0, 8, 2):
        a(f"v_lshlrev_b32 v{S+T}, 16, v{Q+T}"); a(f"v_and_b32 v{S+T+1}, 0xffff0000, v{Q+T}")
    for T in range(8): a(f"v_mul_f32 v{S+T}, 0x3d93cd3a, v{S+T}")
    for T in range(0, 8, 2): a(f"v_cvt_pk_bf16_f32 v{Q+T}, v{S+T}, v{S+T+1}")
    for T in range(0, 8, 2):
        a(f"v_lshlrev_b32 v{S+T}, 16, v{Q+T}"); a(f"v_and_b32 v{S+T+1}, 0xffff0000, v{Q+T}")
    a(f"v_max3_f32 v{Q}, v{S}, v{S+1}, v{S+2}"); a(f"v_max3_f32 v{Q+1}, v{S+3}, v{S+4}, v{S+5}")
    a(f"v_max3_f32 v{Q}, v{Q}, v{S+6}, v{S+7}"); a(f"v_max_f32 v{Q}, v{Q}, v{Q+1}")
    wave_reduce("v_max_f32", Q, full=False)
    a(f"v_readlane_b32 s61, v{Q}, 63")
    for T in range(8): a(f"v_subrev_f32 v{S+T}, s61, v{S+T}")
    for T in range(8): a(f"v_mul_f32 v{S+T}, 0x3fb8aa3b, v{S+T}")
    for T in range(8): a(f"v_exp_f32 v{S+T}, v{S+T}")
    a(f"v_add_f32 v{Q+1}, v{S}, v{S+1}")
    for T in range(2, 8): a(f"v_add_f32 v{Q+1}, v{Q+1}, v{S+T}")
    wave_reduce("v_add_f32", Q + 1, full=False)
    for T in range(8): a(f"v_cvt_pk_bf16_f32 v{S+T}, v{S+T}, v{S+T}")
    a(f"v_readlane_b32 s62, v{Q+1}, 63")
    a(f"v_mov_b32 v{Q}, s61"); a(f"v_mov_b32 v{Q+1}, s62")
    a("s_mov_b64 exec, 0xff")
    issue("ML", f"buffer_store_dwordx2 v[{Q}:{Q+1}], v29, {WS}, s56 offen sc1")
    a("s_mov_b64 exec, -1")
    stamp(4)
    fill_slots = [24 - nv1 + i for i in range(8)]
    assert fill_slots[-1] < 23, fill_slots
    AT = POOL + 4 * 23
    isY = True
    pend = [("V", i) for i in range(nextv, 24)]
    fills = [("F", i) for i in range(8)]
    def ldF(i):
        sl = slot(fill_slots[i])
        if i == 0: issue("F0", f"buffer_load_dwordx4 {sl}, v32, {DN}, s60 offen{WF}")
        elif i == 1: issue("F1", f"buffer_load_dwordx4 {sl}, v33, {DN}, s60 offen{WF}")
        else:
            rho = i - 2
            issue(f"F{i}", f"buffer_load_dwordx4 {sl}, v31, {WO}, s{58 + rho//3} offen offset:{1280*(rho%3)}{WF}")
    base_ops = list(ops)
    a("s_cmp_ge_u32 s7, 5"); a("s_cbranch_scc1 L_plain")
    for variant in ("y", "plain"):
        ops[:] = base_ops
        if variant == "plain": a("L_plain:")
        todo = list(pend) + (list(fills) if variant == "y" else [])
        done_mfma = 0
        def landed():
            return None
        def pv(i):
            T, k = divmod(i, 3)
            if k == 0:
                for r in range(4): a(f"v_and_b32 v{AT+r}, v{S+T}, v{M+r}")
            c = f"v[{ACC+4*k}:{ACC+4*k+3}]"
            a(f"v_mfma_f32_16x16x32_bf16 {c}, v[{AT}:{AT+3}], {slot(vslot[i])}, " + ("0" if T == 0 else c))
        first = True
        while todo:
            kind, i = todo.pop(0)
            a(f"s_waitcnt vmcnt({D-1})")
            land = set(ops[:len(ops) - (D - 1)])
            (ldV if kind == "V" else ldF)(i)
            while done_mfma < 24 and f"V{done_mfma}" in land:
                pv(done_mfma); done_mfma += 1
        while done_mfma < 24:
            wait_for(f"V{done_mfma}"); pv(done_mfma); done_mfma += 1
        stamp(5)
        a("s_mov_b32 exec_lo, 0x00ff00ff"); a("s_mov_b32 exec_hi, 0xff00ff00")
        for k in range(3): a(f"ds_write_b128 v30, v[{ACC+4*k}:{ACC+4*k+3}] offset:{LO+256*k}")
        a("s_mov_b64 exec, -1")
        a("s_waitcnt lgkmcnt(0)")
        if variant == "plain":
            if stamps:
                a("s_barrier")
            a("s_branch L_fin")
            continue
        a("s_barrier")
        stamp(6)
        a(f"ds_read_b32 v8, v34 offset:{LH}"); a(f"ds_read_b32 v9, v34 offset:{LH+16}")
        a("v_and_b32 v10, 8, v0"); a("v_cmp_eq_u32 vcc, 0, v10")
        for r in range(4): a(f"v_cndmask_b32 v{M+r}, 0, v{M+r}, vcc")
        a("v_mul_u32_u24 v10, 12, v1"); a("v_lshl_add_u32 v10, v2, 7, v10")
        a(f"s_lshl_b32 s53, s6, 11"); a(f"s_add_u32 s53, s53, {INB}")
        a("v_and_b32 v11, 15, v0"); a("v_lshlrev_b32 v11, 13, v11"); a("v_and_b32 v12, 16, v0"); a("v_lshl_add_u32 v11, v12, 8, v11")
        a("s_lshl_b32 s54, s7, 17"); a("s_lshl_b32 s55, s2, 4"); a("s_add_u32 s54, s54, s55"); a(f"s_add_u32 s54, s54, {INY}")
        a(f"s_mov_b32 s57, {SPIN}")
        a("s_waitcnt lgkmcnt(0)")
        Y = "v[16:19]"
        wait_for("F1")
        for i in range(2):
            T = 20 + 4 * i
            for r in range(4): a(f"v_and_b32 v{T+r}, v{8+i}, v{M+r}")
            a(f"v_mfma_f32_16x16x32_bf16 {Y}, v[{T}:{T+3}], {slot(fill_slots[i])}, " + ("0" if i == 0 else Y))
        a("L_pollo:")
        a(f"buffer_load_dwordx3 v[12:14], v10, {WS}, s53 offen sc1")
        a("s_sub_u32 s57, s57, 1"); a("s_cbranch_scc1 L_pollo_done")
        a("s_waitcnt vmcnt(0)")
        a("v_max3_u32 v15, v12, v13, v14")
        a("v_cmp_eq_u32 vcc, -1, v15")
        a("s_cbranch_vccnz L_pollo")
        a("L_pollo_done:")
        a("s_waitcnt vmcnt(0)")
        stamp(7)
        for st in range(3):
            for i in range(3): a(f"v_add_f32_dpp v{12+i}, v{12+i}, v{12+i} {DP[st]} row_mask:0xf bank_mask:0xf")
        for i in range(3): a(f"v_cvt_pk_bf16_f32 v{12+i}, v{12+i}, v{12+i}")
        for rho in range(6):
            T = 20 + 4 * (rho & 1)
            for r in range(4):
                if rho < 3: a(f"v_and_b32 v{T+r}, v{12+rho}, v{M+r}")
                else: a(f"v_and_b32_dpp v{T+r}, v{12+rho-3}, v{M+r} row_ror:8 row_mask:0xf bank_mask:0xf")
            a(f"v_mfma_f32_16x16x32_bf16 {Y}, v[{T}:{T+3}], {slot(fill_slots[2+rho])}, {Y}")
        a("s_mov_b32 exec_hi, 0")
        a(f"buffer_store_dwordx4 {Y}, v11, {WS}, s54 offen sc1")
        stamp(8)
        a("s_branch L_fin")
    a("L_fin:")
    dump_stamps()
    a("L_end:"); a("s_endpgm")
    a.raw('.section .rodata,"a"'); a.raw(".p2align 6"); a.raw(f".amdhsa_kernel {KN}")
    a.raw("  .amdhsa_next_free_vgpr 168"); a.raw(f"  .amdhsa_next_free_sgpr {96 if stamps else 70}"); a.raw("  .amdhsa_accum_offset 168")
    a.raw("  .amdhsa_group_segment_fixed_size 0"); a.raw("  .amdhsa_kernarg_size 96"); a.raw("  .amdhsa_user_sgpr_count 2")
    a.raw("  .amdhsa_user_sgpr_kernarg_segment_ptr 1"); a.raw("  .amdhsa_system_sgpr_workgroup_id_x 1"); a.raw(".end_amdhsa_kernel")
    return a.finish()

if __name__ == "__main__":
    ap = argparse.ArgumentParser()
    ap.add_argument("out"); ap.add_argument("--nont", action="store_true"); ap.add_argument("--D", type=int, default=6)
    ap.add_argument("--nv1", type=int, default=9); ap.add_argument("--stamps", action="store_true"); ap.add_argument("--qk", type=int, default=1)
    ap.add_argument("--nontw", action="store_true")
    x = ap.parse_args()
    open(x.out, "w").write(gen(nt=not x.nont, D=x.D, nv1=x.nv1, stamps=x.stamps, qk_issue=x.qk, ntw=not x.nontw))
```

```python
import sys, argparse
from asmlib import Asm
KN = "parallel_sum__mha_block_cached__glu_gated_glu__decode_kernel"
HDR = open("parallel_sum__mha_block_cached__glu_gated_glu__decode.s.ref").read().split("; Override launch geometry")[0]

QPUB = 0x010000
MLPUB = 0x080000
OINB = 0x100000
BINB = 0x180000
YINB = 0x200000
STAMP = 0x400000
LQ, LH, LF1, LQF, LSF, LMF, LVF, LSC, LP1, LO = 0, 384, 512, 528, 532, 544, 576, 1024, 1536, 5632
LDS = LO + 16 * 768
SPIN = 1 << 16
LSPIN = 1 << 18
TAG = 64

def gen(nt=True, D=6, nv1=4, stamps=False, qk_every=2, ntw=True, slq=8, slml=8, sly0=8, wo_at=24, D2=None, hfirst=False, warm=True, hearly=False, bar='A'):
    if D2 is None: D2 = D
    a = Asm()
    KVF = " nt" if nt else ""
    WF = " nt" if ntw else ""
    a.raw(HDR.rstrip())
    a.raw(f"; @launch grid=(256,1,1) block=(768,1,1) lds={LDS}")
    a.raw('.amdgcn_target "amdgcn-amd-amdhsa--gfx950"')
    a.raw(".text"); a.raw(f".globl {KN}"); a.raw(".p2align 8"); a.raw(f".type {KN},@function"); a.raw(f"{KN}:")
    def stamp(i):
        if stamps: a(f"s_memrealtime s[{70+2*i}:{71+2*i}]")
    def dump_stamps(n=12):
        if not stamps: return
        a("s_mov_b64 exec, 1")
        a("s_waitcnt lgkmcnt(0)")
        a("s_mul_i32 s52, s2, 12"); a("s_add_u32 s52, s52, s3"); a("s_lshl_b32 s52, s52, 7"); a(f"s_add_u32 s52, s52, {STAMP}")
        a("v_mov_b32 v1, 0")
        for i in range(n):
            a(f"v_mov_b32 v2, s{70+2*i}"); a(f"v_mov_b32 v3, s{71+2*i}")
            a(f"buffer_store_dwordx2 v[2:3], v1, s[48:51], s52 offen offset:{8*i}")
    def srd_ld(base, karg): a(f"s_load_dwordx2 s[{base}:{base+1}], s[0:1], {karg}")
    def srd_c(base, size): a(f"s_mov_b32 s{base+2}, {size}"); a(f"s_mov_b32 s{base+3}, 0x20000")
    def srd(base, karg, size): srd_ld(base, karg); srd_c(base, size)
    X, K, V, WQ, WO, GA, UP, DN, OUT, DBG, WS = [f"s[{8+4*i}:{11+4*i}]" for i in range(11)]
    def mktag():
        a(f"s_mul_i32 s{TAG}, s{TAG}, 1664525"); a(f"s_add_u32 s{TAG}, s{TAG}, 1013904223")
    def mktagbytes():
        for i in range(4): a(f"s_bfe_u32 s{TAG+1+i}, s{TAG}, {(8 << 16) | (8 * i)}")

    a("L_start:")
    a("s_cmp_ge_u32 s2, 256"); a("s_cbranch_scc1 L_end")
    a("v_and_b32 v1, 31, v0"); a("v_lshlrev_b32 v1, 2, v1"); a("v_mov_b32 v2, 0")
    a(f"ds_write_b32 v1, v2 offset:{LF1}")
    a("s_waitcnt lgkmcnt(0)")
    srd_ld(12, 8); srd_ld(16, 16); srd_ld(48, 88)
    if warm:
        a("s_getpc_b64 s[44:45]")
        a("L_pc:")
        a("v_lshlrev_b32 v1, 7, v0")
        a("v_cmp_gt_u32 vcc, L_end-L_pc, v1")
        a("s_and_saveexec_b64 s[46:47], vcc")
        a("s_cbranch_execz L_nowarm")
        a("global_load_dword v167, v1, s[44:45]")
        a("L_nowarm:")
        a("s_mov_b64 exec, -1")
    if stamps:
        for i in range(12): a(f"s_mov_b64 s[{70+2*i}:{71+2*i}], 0")
    stamp(0)
    a("v_lshrrev_b32 v1, 6, v0")
    a("v_and_b32 v0, 63, v0")
    a("v_readfirstlane_b32 s3, v1")
    srd_c(48, 0x10000000)
    a("s_and_b32 s4, s2, 7"); a("s_lshl_b32 s4, s4, 2"); a("s_lshr_b32 s5, s2, 6"); a("s_add_u32 s4, s4, s5")
    a("s_bfe_u32 s5, s2, 0x30003")
    a("s_lshl_b32 s6, s4, 3"); a("s_add_u32 s6, s6, s5")
    a("v_lshrrev_b32 v1, 3, v0")
    a("v_and_b32 v2, 7, v0")
    if bar == 'A': a("s_barrier")
    if hfirst:
        a("s_sub_u32 s7, s3, 4"); a("s_cbranch_scc1 L_help")
    else:
        a("s_mov_b32 s7, s3")
        a("s_cmp_ge_u32 s3, 8"); a("s_cbranch_scc1 L_help")

    def masks(M, t0, t1):
        a(f"v_and_b32 v{t0}, 1, v2"); a(f"v_lshlrev_b32 v{t0}, 4, v{t0}")
        a(f"v_mov_b32 v{t1}, 0xffff"); a(f"v_lshlrev_b32 v{t0}, v{t0}, v{t1}")
        a(f"v_lshrrev_b32 v{t1}, 1, v2")
        for r in range(4):
            a(f"v_cmp_eq_u32 vcc, {r}, v{t1}")
            a(f"v_cndmask_b32 v{M+r}, 0, v{t0}, vcc")
    DP = ("quad_perm:[1,0,3,2]", "quad_perm:[2,3,0,1]", "row_half_mirror")
    def wave_reduce(op, v, full=True):
        if full:
            for m in DP: a(f"{op}_dpp v{v}, v{v}, v{v} {m} row_mask:0xf bank_mask:0xf")
        a(f"{op}_dpp v{v}, v{v}, v{v} row_ror:8 row_mask:0xf bank_mask:0xf")
        a(f"{op}_dpp v{v}, v{v}, v{v} row_bcast:15 row_mask:0xa bank_mask:0xf")
        a(f"{op}_dpp v{v}, v{v}, v{v} row_bcast:31 row_mask:0xc bank_mask:0xf")
    def rowaddr(dst, t, rowbytes, swave):
        a(f"v_lshrrev_b32 v{dst}, 5, v0"); a(f"v_mul_u32_u24 v{dst}, {rowbytes}, v{dst}"); a(f"v_lshl_add_u32 v{dst}, v2, 5, v{dst}")
        a(f"v_and_b32 v{t}, 16, v0"); a(f"v_add_u32 v{dst}, v{dst}, v{t}")
        a(f"s_mul_i32 s57, {swave}, {2*rowbytes}"); a(f"v_add_u32 v{dst}, s57, v{dst}")
    def rowexec(): a("s_mov_b32 exec_lo, 0x00ff00ff"); a("s_mov_b32 exec_hi, 0xff00ff00")
    def ldsspin(name, reads, flagreg, sleep):
        a(f"s_mov_b32 s57, {LSPIN}")
        a(f"{name}:")
        for r in reads: a(r)
        a(f"s_sub_u32 s57, s57, 1"); a(f"s_cbranch_scc1 {name}_done")
        a("s_waitcnt lgkmcnt(0)")
        a(f"v_cmp_eq_u32 vcc, 0, v{flagreg}")
        a(f"s_cbranch_vccz {name}_done")
        a(f"s_sleep {sleep}")
        a(f"s_branch {name}")
        a(f"{name}_done:")
        a("s_waitcnt lgkmcnt(0)")

    def helper_start():
        a("L_help:")
        a("s_setprio 3")
        srd(8, 0, 1280)
        srd(32, 56, 1966080)
        if bar == 'B': a("s_barrier")
        if hfirst: a("s_mov_b32 s7, s3")
        else: a("s_sub_u32 s7, s3, 8")
        a("s_and_b32 s52, s5, 1"); a("s_mul_i32 s52, s52, 320"); a("s_mul_i32 s53, s7, 80"); a("s_add_u32 s55, s52, s53")
        a("s_lshr_b32 s59, s5, 1")
        a("s_cmp_eq_u32 s59, 3"); a("s_cbranch_scc1 L_h3pre")
        srd(20, 24, 7864320)
        a("v_mul_u32_u24 v3, 122880, v1"); a("v_lshl_add_u32 v3, v2, 4, v3")
        a("s_mul_i32 s52, s55, 12288"); a("s_mul_i32 s53, s4, 384"); a("s_add_u32 s52, s52, s53")
        a("s_lshl_b32 s53, s59, 7"); a("s_add_u32 s52, s52, s53")
        a("s_movk_i32 s54, 12288")
        a("s_branch L_hld")
        a("L_h3pre:")
        srd(20, 48, 1966080)
        a("v_mul_u32_u24 v3, 30720, v1"); a("v_lshl_add_u32 v3, v2, 4, v3")
        a("v_cmp_lt_u32 vcc, 5, v2")
        a("v_mov_b32 v4, 0x40000000")
        a("v_cndmask_b32 v3, v3, v4, vcc")
        a("s_mul_i32 s52, s55, 3072"); a("s_mul_i32 s53, s4, 96"); a("s_add_u32 s52, s52, s53")
        a("s_movk_i32 s54, 3072")
        a("L_hld:")
        a("v_mul_u32_u24 v4, 20, v0")
        a("v_mul_u32_u24 v5, 20, v1")
        a("s_lshl_b32 s55, s55, 1")
        a("s_waitcnt lgkmcnt(0)")
        a(f"s_load_dword s{TAG}, s[48:49], 0")
        a(f"buffer_load_dwordx4 v[8:11], v4, {X}, 0 offen")
        a(f"buffer_load_dword v12, v4, {X}, 0 offen offset:16")
        a(f"buffer_load_dwordx4 v[14:17], v5, {X}, s55 offen")
        a(f"buffer_load_dword v18, v5, {X}, s55 offen offset:16")
        a("s_mov_b32 s53, s52")
        for r in range(10):
            a(f"buffer_load_dwordx4 v[{WB+4*r}:{WB+4*r+3}], v3, {WQ}, s53 offen{WF}")
            if r < 9: a("s_add_u32 s53, s53, s54")
        a("s_cmp_lg_u32 s59, 3"); a("s_cbranch_scc1 L_hinit")
        for r in range(10):
            a(f"buffer_load_dwordx4 v[{WB+40+4*r}:{WB+40+4*r+3}], v3, {UP}, s52 offen{WF}")
            if r < 9: a("s_add_u32 s52, s52, s54")
    WB = 64

    srd_c(12, 50331648); srd_c(16, 50331648)
    a("v_mul_u32_u24 v3, 384, v1"); a("v_lshl_add_u32 v3, v2, 4, v3")
    a("s_mul_i32 s52, s6, 196608"); a("s_mul_i32 s53, s7, 24576"); a("s_add_u32 s52, s52, s53")
    a("s_add_u32 s53, s52, 6144"); a("s_add_u32 s54, s52, 12288"); a("s_add_u32 s55, s52, 18432")
    M = 4; S = 8; Q = 16; ACC = 16; POOL = 36
    NSLOT = (168 - POOL) // 4
    def slot(i): return f"v[{POOL+4*i}:{POOL+4*i+3}]"
    def kvoff(i):
        T, k = divmod(i, 3)
        return f"s{52 + T//2}", (T & 1) * 3072 + 128 * k
    ops = []
    def issue(name, text): ops.append(name); a(text)
    def wait_for(name):
        n = len(ops) - 1 - ops.index(name)
        a(f"s_waitcnt vmcnt({n})")
    def throttle(d):
        if len(ops) >= d: a(f"s_waitcnt vmcnt({d-1})")
    NX = NSLOT - 24
    vslot = {i: (24 + i if i < NX else i - NX) for i in range(24)}
    assert nv1 <= NX
    def ldK(i):
        so, off = kvoff(i); issue(f"K{i}", f"buffer_load_dwordx4 {slot(i)}, v3, {K}, {so} offen offset:{off}{KVF}")
    def ldV(i):
        so, off = kvoff(i); issue(f"V{i}", f"buffer_load_dwordx4 {slot(vslot[i])}, v3, {V}, {so} offen offset:{off}{KVF}")
        if i + 1 == wo_at: a(f"ds_write_b32 v32, v33 offset:{LVF}")
    a("s_waitcnt lgkmcnt(0)")
    for i in range(D): ldK(i)
    a(f"s_load_dword s{TAG}, s[48:49], 0")
    if bar == 'B': a("s_barrier")
    stamp(1)
    if hearly:
        a("s_branch L_stream2")
        helper_start()
        a("s_branch L_hinit")
        a("L_stream2:")
    masks(M, 28, 29)
    for T in range(8): a(f"v_mov_b32 v{S+T}, 0")
    a("v_lshlrev_b32 v28, 4, v2")
    a("v_mov_b32 v29, 0")
    a("s_lshl_b32 s56, s6, 7"); a("s_lshl_b32 s57, s7, 4"); a("s_add_u32 s56, s56, s57"); a(f"s_add_u32 s56, s56, {MLPUB}")
    rowaddr(30, 31, 768, "s7")
    a("s_lshl_b32 s57, s5, 5"); a("s_lshl_b32 s58, s7, 2"); a("s_add_u32 s57, s57, s58"); a("v_mov_b32 v31, s57")
    a("v_mov_b32 v32, s58"); a("v_mov_b32 v33, 1")
    for i in range(D, 24):
        throttle(D); ldK(i)
        if i == D:
            a("s_waitcnt lgkmcnt(0)"); mktag()
    for i in range(nv1): throttle(D); ldV(i)
    stamp(2)
    ldsspin("L_sq", [f"ds_read_b32 v34, v29 offset:{LQF}"] + [f"ds_read_b128 v[{Q+4*k}:{Q+4*k+3}], v28 offset:{LQ+128*k}" for k in range(3)], 34, 2)
    stamp(3)
    nextv = nv1
    def dppstep(T, st): a(f"v_add_f32_dpp v{S+T}, v{S+T}, v{S+T} {DP[st]} row_mask:0xf bank_mask:0xf")
    known = len(ops) - D
    for T in range(8):
        if ops.index(f"K{3*T+2}") >= known: wait_for(f"K{3*T+2}")
        for k in range(3):
            for r in range(4):
                a(f"v_dot2c_f32_bf16 v{S+T}, v{POOL+4*(3*T+k)+r}, v{Q+4*k+r}")
            if T > 0: dppstep(T - 1, k)
        if T % qk_every == qk_every - 1 and nextv < 24 and (vslot[nextv] >= 24 or vslot[nextv] < 3 * (T + 1)):
            ldV(nextv); nextv += 1
    for st in range(3): dppstep(7, st)
    for T in range(0, 8, 2): a(f"v_cvt_pk_bf16_f32 v{Q+T}, v{S+T}, v{S+T+1}")
    for T in range(0, 8, 2):
        a(f"v_lshlrev_b32 v{S+T}, 16, v{Q+T}"); a(f"v_and_b32 v{S+T+1}, 0xffff0000, v{Q+T}")
    for T in range(8): a(f"v_mul_f32 v{S+T}, 0x3d93cd3a, v{S+T}")
    for T in range(0, 8, 2): a(f"v_cvt_pk_bf16_f32 v{Q+T}, v{S+T}, v{S+T+1}")
    for T in range(0, 8, 2):
        a(f"v_lshlrev_b32 v{S+T}, 16, v{Q+T}"); a(f"v_and_b32 v{S+T+1}, 0xffff0000, v{Q+T}")
    a(f"v_max3_f32 v{Q}, v{S}, v{S+1}, v{S+2}"); a(f"v_max3_f32 v{Q+1}, v{S+3}, v{S+4}, v{S+5}")
    a(f"v_max3_f32 v{Q}, v{Q}, v{S+6}, v{S+7}"); a(f"v_max_f32 v{Q}, v{Q}, v{Q+1}")
    wave_reduce("v_max_f32", Q, full=False)
    ldV(nextv); nextv += 1
    a(f"v_readlane_b32 s61, v{Q}, 63")
    for T in range(8): a(f"v_subrev_f32 v{S+T}, s61, v{S+T}")
    for T in range(8): a(f"v_mul_f32 v{S+T}, 0x3fb8aa3b, v{S+T}")
    for T in range(8): a(f"v_exp_f32 v{S+T}, v{S+T}")
    a(f"v_add_f32 v{Q+1}, v{S}, v{S+1}")
    for T in range(2, 8): a(f"v_add_f32 v{Q+1}, v{Q+1}, v{S+T}")
    a(f"v_mov_b32 v{Q+2}, s{TAG}")
    wave_reduce("v_add_f32", Q + 1, full=False)
    a("s_mov_b32 exec_lo, 0"); a("s_brev_b32 exec_hi, 1")
    issue("ML", f"buffer_store_dwordx3 v[{Q}:{Q+2}], v29, {WS}, s56 offen sc1")
    a(f"ds_write_b32 v32, v33 offset:{LMF}")
    a("s_mov_b64 exec, -1")
    stamp(4)
    while nextv < 24: throttle(D2); ldV(nextv); nextv += 1
    stamp(5)
    ldsspin("L_ss", [f"ds_read_b32 v35, v29 offset:{LSF}", f"ds_read_b32 v34, v31 offset:{LSC}"], 35, 2)
    stamp(6)
    for T in range(8): a(f"v_mul_f32 v{S+T}, v{S+T}, v34")
    for T in range(8): a(f"v_cvt_pk_bf16_f32 v{S+T}, v{S+T}, v{S+T}")
    AT = [POOL + 4 * 23, POOL + 4 * 22]
    known = len(ops) - D2
    for i in range(24):
        T, k = divmod(i, 3)
        at = AT[T & 1]
        if k == 0:
            for r in range(4): a(f"v_and_b32 v{at+r}, v{S+T}, v{M+r}")
        if ops.index(f"V{i}") >= known: wait_for(f"V{i}")
        c = f"v[{ACC+4*k}:{ACC+4*k+3}]"
        a(f"v_mfma_f32_16x16x32_bf16 {c}, v[{at}:{at+3}], {slot(vslot[i])}, " + ("0" if T == 0 else c))
    rowexec()
    for k in range(3): a(f"ds_write_b128 v30, v[{ACC+4*k}:{ACC+4*k+3}] offset:{LO+256*k}")
    a("s_waitcnt lgkmcnt(0)")
    if stamps:
        stamp(7)
        a("s_barrier")
        a("s_branch L_fin")
    else:
        a("s_endpgm")

    if not hearly: helper_start()
    a("L_hinit:")
    stamp(1)
    srd(24, 32, 7864320); srd(36, 64, 1966080); srd(40, 72, 1280)
    masks(24, 6, 7)
    rowaddr(20, 21, 256, "s7")
    a("v_lshlrev_b32 v21, 2, v0")
    a("v_lshlrev_b32 v22, 3, v0")
    a("s_lshl_b32 s58, s7, 2"); a("v_mov_b32 v19, s58")
    a("v_and_b32 v23, 12, v21")
    a("s_waitcnt vmcnt(20)")
    a("s_cmp_eq_u32 s59, 3"); a("s_cbranch_scc1 L_hx")
    a("s_waitcnt vmcnt(10)")
    a("L_hx:")
    for i in range(5):
        a(f"v_lshlrev_b32 v{28+2*i}, 16, v{8+i}"); a(f"v_and_b32 v{29+2*i}, 0xffff0000, v{8+i}")
    a("v_add_f32 v38, v28, v29")
    for i in range(2, 10): a(f"v_add_f32 v38, v38, v{28+i}")
    wave_reduce("v_add_f32", 38)
    a("v_readlane_b32 s56, v38, 63")
    a("v_mov_b32 v39, 0x3acccccd")
    a("v_mul_f32 v39, s56, v39")
    for i in range(10): a(f"v_sub_f32 v{28+i}, v{28+i}, v39")
    a("v_mul_f32 v38, v28, v28")
    for i in range(1, 10): a(f"v_fmac_f32 v38, v{28+i}, v{28+i}")
    wave_reduce("v_add_f32", 38)
    a("v_readlane_b32 s56, v38, 63")
    a("v_mov_b32 v38, 0x3acccccd")
    a("v_mul_f32 v38, s56, v38")
    a("v_cvt_pk_bf16_f32 v38, v38, v39")
    a("v_and_b32 v39, 0xffff0000, v38")
    a("v_lshlrev_b32 v38, 16, v38")
    a("v_add_f32 v38, 0x3727c5ac, v38")
    a("v_cvt_pk_bf16_f32 v38, v38, v38")
    a("v_lshlrev_b32 v38, 16, v38")
    a("v_sqrt_f32 v38, v38")
    a("v_cvt_pk_bf16_f32 v38, v38, v38")
    a("v_lshlrev_b32 v38, 16, v38")
    a("v_rcp_f32 v38, v38")
    for i in range(5):
        a(f"v_lshlrev_b32 v{28+2*i}, 16, v{14+i}"); a(f"v_and_b32 v{29+2*i}, 0xffff0000, v{14+i}")
    for i in range(10): a(f"v_sub_f32 v{28+i}, v{28+i}, v39")
    for i in range(5):
        a(f"v_cvt_pk_bf16_f32 v{8+i}, v{28+2*i}, v{29+2*i}")
    for i in range(5):
        a(f"v_lshlrev_b32 v{28+2*i}, 16, v{8+i}"); a(f"v_and_b32 v{29+2*i}, 0xffff0000, v{8+i}")
    for i in range(10): a(f"v_mul_f32 v{28+i}, v{28+i}, v38")
    for i in range(10): a(f"v_cvt_pk_bf16_f32 v{28+i}, v{28+i}, v{28+i}")
    a("s_waitcnt lgkmcnt(0)")
    mktag(); mktagbytes()
    a(f"v_mov_b32 v7, 1")
    a(f"s_lshl_b32 s53, s6, 10"); a(f"s_add_u32 s53, s53, {QPUB}")
    stamp(2)
    a("s_waitcnt vmcnt(0)")
    stamp(3)
    for r in range(10):
        T = 48 + 4 * (r & 1)
        for i in range(4): a(f"v_and_b32 v{T+i}, v{28+r}, v{24+i}")
        a(f"v_mfma_f32_16x16x32_bf16 v[40:43], v[{T}:{T+3}], v[{WB+4*r}:{WB+4*r+3}], " + ("0" if r == 0 else "v[40:43]"))
        a(f"v_mfma_f32_16x16x32_bf16 v[44:47], v[{T}:{T+3}], v[{WB+40+4*r}:{WB+40+4*r+3}], " + ("0" if r == 0 else "v[44:47]"))
    rowexec()
    a(f"ds_write_b128 v20, v[40:43] offset:{LP1}")
    a(f"ds_write_b128 v20, v[44:47] offset:{LP1+2048}")
    a("s_mov_b64 exec, -1")
    a(f"ds_write_b32 v19, v7 offset:{LF1}")
    a(f"ds_read_b32 v8, v23 offset:{LF1}")
    for i in range(8):
        a(f"ds_read2st64_b32 v[{40+2*i}:{41+2*i}], v21 offset0:{LP1//256+2*i} offset1:{LP1//256+2*i+1}")
    a("s_waitcnt lgkmcnt(4)")
    a(f"v_cmp_eq_u32 vcc, 0, v8")
    a("s_cbranch_vccnz L_hnopub")
    a("v_pk_add_f32 v[40:41], v[40:41], v[42:43]"); a("v_pk_add_f32 v[44:45], v[44:45], v[46:47]")
    a("v_pk_add_f32 v[40:41], v[40:41], v[44:45]"); a("v_add_f32 v40, v40, v41"); a(f"v_mov_b32 v41, s{TAG}")
    a(f"buffer_store_dwordx2 v[40:41], v22, {WS}, s53 offen sc1")
    a("s_cmp_lg_u32 s59, 3"); a("s_cbranch_scc1 L_hnopub")
    a("s_waitcnt lgkmcnt(0)")
    a("v_pk_add_f32 v[48:49], v[48:49], v[50:51]"); a("v_pk_add_f32 v[52:53], v[52:53], v[54:55]")
    a("v_pk_add_f32 v[48:49], v[48:49], v[52:53]"); a("v_add_f32 v48, v48, v49"); a(f"v_mov_b32 v49, s{TAG}")
    a(f"buffer_store_dwordx2 v[48:49], v22, {WS}, s53 offen offset:512 sc1")
    a("L_hnopub:")
    a("s_waitcnt lgkmcnt(0)")
    stamp(4)
    a("v_and_b32 v19, 28, v21")
    a("s_cmp_lg_u32 s7, 0"); a("s_cbranch_scc1 L_hy")

    a("v_lshrrev_b32 v6, 5, v0"); a("v_and_b32 v8, 31, v0"); a("v_lshlrev_b32 v6, 10, v6"); a("v_lshl_add_u32 v6, v8, 4, v6")
    a(f"s_lshl_b32 s53, s4, 13"); a(f"s_add_u32 s53, s53, {QPUB}"); a("s_add_u32 s54, s53, 4096")
    a(f"s_mov_b32 s57, {SPIN}")
    a("v_mov_b32 v8, 0")
    a("L_pollq:")
    a(f"buffer_load_dwordx4 v[64:67], v6, {WS}, s53 offen sc1")
    a(f"buffer_load_dwordx4 v[68:71], v6, {WS}, s53 offen offset:2048 sc1")
    a(f"buffer_load_dwordx4 v[72:75], v6, {WS}, s54 offen sc1")
    a("s_sub_u32 s57, s57, 1"); a("s_cbranch_scc1 L_pollq_done")
    a("s_waitcnt vmcnt(0)")
    for i in range(6): a(f"v_xor_b32 v{65+2*i}, s{TAG}, v{65+2*i}")
    a("v_or3_b32 v65, v65, v67, v69"); a("v_or3_b32 v71, v71, v73, v75"); a("v_or_b32 v65, v65, v71")
    a("v_cmp_ne_u32 vcc, 0, v65")
    a("s_cbranch_vccz L_pollq_done")
    a(f"s_sleep {slq}")
    a("s_branch L_pollq")
    a("L_pollq_done:")
    a("s_waitcnt vmcnt(0)")
    stamp(5)
    for i in range(6): a(f"v_permlane32_swap_b32 v{64+2*i}, v{65+2*i}")
    for i in range(6): a(f"v_add_f32 v{64+2*i}, v{64+2*i}, v{65+2*i}")
    for k in range(3): a(f"v_cvt_pk_bf16_f32 v{64+4*k}, v{64+4*k}, v{66+4*k}")
    a("s_mov_b32 exec_hi, 0")
    for k in range(3): a(f"ds_write_b32 v21, v{64+4*k} offset:{LQ+128*k}")
    a(f"ds_write_b32 v8, v7 offset:{LQF}")
    a("s_mov_b32 exec_hi, -1")
    a("v_lshlrev_b32 v6, 4, v0")
    def red4(r, t):
        a(f"v_add_f32_dpp v{t}, v{r}, v{r} row_ror:8 row_mask:0xf bank_mask:0x3")
        a(f"v_add_f32_dpp v{t+1}, v{r+2}, v{r+2} row_ror:8 row_mask:0xf bank_mask:0x3")
        a(f"v_add_f32_dpp v{t}, v{r+1}, v{r+1} row_ror:8 row_mask:0xf bank_mask:0xc")
        a(f"v_add_f32_dpp v{t+1}, v{r+3}, v{r+3} row_ror:8 row_mask:0xf bank_mask:0xc")
        a(f"v_add_f32_dpp v{t+2}, v{t}, v{t} row_half_mirror row_mask:0xf bank_mask:0x5")
        a(f"v_add_f32_dpp v{t+2}, v{t+1}, v{t+1} row_half_mirror row_mask:0xf bank_mask:0xa")
        a(f"v_add_f32_dpp v{t+2}, v{t+2}, v{t+2} quad_perm:[1,0,3,2] row_mask:0xf bank_mask:0xf")
        a(f"v_add_f32_dpp v{t+2}, v{t+2}, v{t+2} quad_perm:[2,3,0,1] row_mask:0xf bank_mask:0xf")
        a(f"v_mov_b32 v{t}, v{t+2}")
        a(f"v_permlane32_swap_b32 v{t}, v{t+1}")
        a(f"v_add_f32 v{t+2}, v{t+2}, v{t+1}")
        a(f"v_mov_b32 v{t}, v{t+2}")
        a(f"v_permlane16_swap_b32 v{t}, v{t+1}")
        a(f"v_add_f32 v{t+2}, v{t+2}, v{t+1}")
    a(f"s_lshl_b32 s53, s4, 10"); a(f"s_add_u32 s53, s53, {MLPUB}")
    ldsspin("L_wml", [f"ds_read_b32 v12, v19 offset:{LMF}"], 12, 4)
    stamp(6)
    a(f"s_mov_b32 s57, {SPIN}")
    a("L_pollml:")
    a(f"buffer_load_dwordx3 v[12:14], v6, {WS}, s53 offen sc1")
    a("s_sub_u32 s57, s57, 1"); a("s_cbranch_scc1 L_pollml_done")
    a("s_waitcnt vmcnt(0)")
    a(f"v_cmp_ne_u32 vcc, s{TAG}, v14")
    a("s_cbranch_vccz L_pollml_done")
    a(f"s_sleep {slml}")
    a("s_branch L_pollml")
    a("L_pollml_done:")
    a("s_waitcnt vmcnt(0)")
    stamp(7)
    a("v_mov_b32 v14, v12")
    wave_reduce("v_max_f32", 14)
    a("v_readlane_b32 s56, v14, 63")
    a("v_subrev_f32 v12, s56, v12")
    a("v_mul_f32 v12, 0x3fb8aa3b, v12")
    a("v_exp_f32 v12, v12")
    a("v_mul_f32 v13, v13, v12")
    wave_reduce("v_add_f32", 13)
    a("v_rcp_f32 v13, v13")
    a("v_readlane_b32 s56, v13, 63")
    a("v_mul_f32 v12, s56, v12")
    a(f"ds_write_b32 v21, v12 offset:{LSC}")
    a(f"ds_write_b32 v8, v7 offset:{LSF}")
    a("v_lshlrev_b32 v7, 10, v1"); a("v_lshl_add_u32 v7, v2, 4, v7")
    a("s_lshl_b32 s54, s4, 13"); a("s_lshl_b32 s55, s5, 7"); a("s_add_u32 s54, s54, s55"); a(f"s_add_u32 s54, s54, {OINB}")
    a("s_cmp_ge_u32 s2, 160"); a("s_cbranch_scc1 L_b4")
    a("v_bfe_u32 v8, v0, 2, 1"); a("v_bfe_u32 v9, v0, 3, 1"); a("v_lshl_add_u32 v8, v8, 1, v9"); a("v_lshlrev_b32 v8, 1, v8")
    a("s_lshl_b32 s58, s2, 3")
    a(f"buffer_load_ushort v9, v8, {X}, s58 offen")
    a(f"s_lshl_b32 s53, s2, 10"); a(f"s_add_u32 s53, s53, {BINB}")
    a(f"s_mov_b32 s57, {SPIN}")
    a("L_pollb:")
    a(f"buffer_load_dwordx4 v[12:15], v6, {WS}, s53 offen sc1")
    a("s_sub_u32 s57, s57, 1"); a("s_cbranch_scc1 L_pollb_done")
    a("s_waitcnt vmcnt(0)")
    for i in range(4): a(f"v_xor_b32 v{12+i}, s{TAG+1+i}, v{12+i}")
    a("v_or3_b32 v16, v12, v13, v14"); a("v_or_b32 v16, v16, v15"); a("v_and_b32 v16, 0xff, v16")
    a("v_cmp_ne_u32 vcc, 0, v16")
    a("s_cbranch_vccz L_pollb_done")
    a("s_sleep 4")
    a("s_branch L_pollb")
    a("L_pollb_done:")
    a("s_waitcnt vmcnt(0)")
    red4(12, 16)
    a("v_cvt_pk_bf16_f32 v10, v18, v18")
    a("v_lshlrev_b32 v10, 16, v10")
    a("v_lshlrev_b32 v9, 16, v9")
    a(f"s_lshl_b32 s53, s2, 12"); a(f"s_add_u32 s53, s53, {YINB}")
    a(f"s_mov_b32 s57, {SPIN}")
    a("L_b4:")
    stamp(8)
    a("s_barrier")
    stamp(9)
    for i in range(24):
        k = i % 3; rp = i // 3
        a(f"ds_read2st64_b32 v[{64+2*i}:{65+2*i}], v21 offset0:{LO//256+6*rp+k} offset1:{LO//256+6*rp+3+k}")
    for rp in range(1, 8):
        a(f"s_waitcnt lgkmcnt({min(15, 21-3*rp)})")
        for k in range(3): a(f"v_pk_add_f32 v[{64+2*k}:{65+2*k}], v[{64+2*k}:{65+2*k}], v[{64+6*rp+2*k}:{65+6*rp+2*k}]")
    for k in range(3): a(f"v_add_f32 v{60+k}, v{64+2*k}, v{65+2*k}")
    a(f"v_mov_b32 v63, s{TAG}")
    a(f"buffer_store_dwordx4 v[60:63], v7, {WS}, s54 offen sc1")
    stamp(10)
    a("s_cmp_ge_u32 s2, 160"); a("s_cbranch_scc1 L_fin")
    if sly0: a(f"s_sleep {sly0}")
    a("L_polly:")
    for t in range(4):
        a(f"buffer_load_dwordx4 v[{64+4*t}:{67+4*t}], v6, {WS}, s53 offen offset:{1024*t} sc1")
    a("s_sub_u32 s57, s57, 1"); a("s_cbranch_scc1 L_polly_done")
    for t in range(4):
        a(f"s_waitcnt vmcnt({3-t})")
        b = 64 + 4 * t
        for i in range(4): a(f"v_xor_b32 v{b+i}, s{TAG+1+i}, v{b+i}")
        if t == 0:
            a(f"v_or3_b32 v14, v{b}, v{b+1}, v{b+2}"); a(f"v_or_b32 v14, v14, v{b+3}")
        else:
            a(f"v_or3_b32 v14, v14, v{b}, v{b+1}"); a(f"v_or3_b32 v14, v14, v{b+2}, v{b+3}")
            a(f"v_pk_add_f32 v[64:65], v[64:65], v[{b}:{b+1}]"); a(f"v_pk_add_f32 v[66:67], v[66:67], v[{b+2}:{b+3}]")
    a("v_and_b32 v14, 0xff, v14")
    a("v_cmp_ne_u32 vcc, 0, v14")
    a("s_cbranch_vccnz L_polly")
    a("L_polly_done:")
    a("s_waitcnt vmcnt(0)")
    red4(64, 68)
    a("v_cvt_pk_bf16_f32 v70, v70, v70"); a("v_lshlrev_b32 v70, 16, v70")
    a("v_add_f32 v70, v70, v9")
    a("v_cvt_pk_bf16_f32 v70, v70, v70"); a("v_lshlrev_b32 v70, 16, v70")
    a("v_add_f32 v70, v70, v10")
    a("v_cvt_pk_bf16_f32 v70, v70, v70")
    a("s_mov_b64 exec, 0x1111")
    a(f"buffer_store_short v70, v8, {OUT}, s58 offen")
    stamp(11)
    a("s_cmp_lg_u32 s2, 0"); a("s_cbranch_scc1 L_fin")
    a("s_mov_b64 exec, 1")
    a(f"buffer_store_dword v63, v8, {WS}, 0 offen sc1")
    a("s_branch L_fin")

    a("L_hy:")
    a("v_and_b32 v10, 8, v0"); a("v_cmp_eq_u32 vcc, 0, v10")
    for r in range(4): a(f"v_cndmask_b32 v{24+r}, 0, v{24+r}, vcc")
    a("v_lshrrev_b32 v4, 4, v0"); a("v_and_b32 v5, 15, v0")
    a("v_mov_b32 v23, 0xffffff00")
    a("v_bfe_u32 v11, v0, 4, 1"); a("v_lshl_add_u32 v11, v5, 1, v11")
    a("s_cmp_lg_u32 s7, 3"); a("s_cbranch_scc1 L_hy_b2")
    a("s_cmp_ge_u32 s5, 2"); a("s_cbranch_scc1 L_hy_b2")
    a("v_mul_u32_u24 v6, 7680, v4"); a("v_lshl_add_u32 v6, v5, 4, v6")
    a("s_mul_i32 s52, s4, 61440"); a("s_mul_i32 s53, s5, 30720"); a("s_add_u32 s52, s52, s53"); a("s_add_u32 s53, s52, 3840")
    DB = 48
    for rho in range(6):
        for cb in range(5):
            r = DB + 4 * (5 * rho + cb)
            a(f"buffer_load_dwordx4 v[{r}:{r+3}], v6, {DN}, s{52+rho//3} offen offset:{1280*(rho%3)+256*cb}{WF}")
    a("v_lshrrev_b32 v6, 5, v0"); a("v_and_b32 v7, 31, v0"); a("v_lshlrev_b32 v6, 10, v6"); a("v_lshl_add_u32 v6, v7, 3, v6")
    a("s_lshl_b32 s53, s4, 13"); a("s_mul_i32 s54, s5, 192"); a("s_add_u32 s53, s53, s54"); a(f"s_add_u32 s53, s53, {QPUB+6144}")
    a("v_mul_u32_u24 v7, 24, v4")
    a("v_lshlrev_b32 v8, 10, v11")
    a("s_lshl_b32 s54, s4, 5"); a("s_lshl_b32 s55, s5, 4"); a("s_add_u32 s54, s54, s55"); a(f"s_add_u32 s54, s54, {BINB}")
    a(f"s_mov_b32 s57, {SPIN}")
    a("s_waitcnt vmcnt(0)")
    a("L_pollg:")
    a(f"buffer_load_dwordx2 v[12:13], v6, {WS}, s53 offen sc1")
    a(f"buffer_load_dwordx2 v[14:15], v6, {WS}, s53 offen offset:512 sc1")
    a("s_sub_u32 s57, s57, 1"); a("s_cbranch_scc1 L_pollg_done")
    a("s_waitcnt vmcnt(0)")
    a(f"v_xor_b32 v13, s{TAG}, v13"); a(f"v_xor_b32 v15, s{TAG}, v15"); a("v_or_b32 v13, v13, v15")
    a("v_cmp_ne_u32 vcc, 0, v13")
    a("s_cbranch_vccz L_pollg_done")
    a("s_sleep 8")
    a("s_branch L_pollg")
    a("L_pollg_done:")
    a("s_waitcnt vmcnt(0)")
    a("v_permlane32_swap_b32 v12, v13"); a("v_permlane32_swap_b32 v14, v15")
    a("v_add_f32 v12, v12, v13"); a("v_add_f32 v13, v14, v15")
    a("v_cvt_pk_bf16_f32 v12, v12, v13")
    a("v_and_b32 v13, 0xffff0000, v12")
    a("v_lshlrev_b32 v12, 16, v12")
    a("v_mul_f32 v12, 0xbfb8aa3b, v12")
    a("v_exp_f32 v12, v12")
    a("v_add_f32 v12, 1.0, v12")
    a("v_rcp_f32 v12, v12")
    a("v_cvt_pk_bf16_f32 v12, v12, v12")
    a("v_lshlrev_b32 v12, 16, v12")
    a("v_mul_f32 v12, v12, v13")
    a("v_cvt_pk_bf16_f32 v12, v12, v12")
    a("s_mov_b32 exec_hi, 0")
    a(f"ds_write_b32 v21, v12 offset:{LH}")
    a("s_mov_b32 exec_hi, -1")
    for i in range(3): a(f"ds_read_b64 v[{12+2*i}:{13+2*i}], v7 offset:{LH+8*i}")
    a("s_waitcnt lgkmcnt(0)")
    for rho in range(6):
        for r in range(4): a(f"v_and_b32 v{AB+r}, v{12+rho}, v{24+r}")
        for cb in range(5):
            r = DB + 4 * (5 * rho + cb); c = f"v[{28+4*cb}:{31+4*cb}]"
            a(f"v_mfma_f32_16x16x32_bf16 {c}, v[{AB}:{AB+3}], v[{r}:{r+3}], " + ("0" if rho == 0 else c))
    a("v_mov_b32 v23, 0xffffff00")
    a("s_mov_b32 exec_hi, 0")
    for cb in range(5):
        for i in range(4): a(f"v_and_or_b32 v{28+4*cb+i}, v{28+4*cb+i}, v23, s{TAG+1+i}")
        a(f"buffer_store_dwordx4 v[{28+4*cb}:{31+4*cb}], v8, {WS}, s54 offen sc1")
        if cb < 4: a("s_add_u32 s54, s54, 32768")
    a("s_mov_b32 exec_hi, -1")
    a("L_hy_b2:")
    a("v_mul_u32_u24 v6, 2560, v4"); a("v_lshl_add_u32 v6, v5, 4, v6")
    a("s_mul_i32 s52, s4, 245760"); a("s_mul_i32 s53, s5, 10240"); a("s_add_u32 s52, s52, s53")
    a("s_lshl_b32 s53, s7, 9"); a("s_add_u32 s52, s52, s53"); a("s_sub_u32 s52, s52, 512")
    a("s_add_u32 s53, s52, 81920"); a("s_add_u32 s54, s52, 163840")
    a("v_lshlrev_b32 v10, 7, v2"); a("v_lshl_add_u32 v10, v1, 4, v10")
    a(f"s_lshl_b32 s55, s6, 10"); a(f"s_add_u32 s55, s55, {OINB}")
    a("v_lshlrev_b32 v11, 12, v11")
    a("s_lshl_b32 s56, s7, 18"); a("s_lshl_b32 s58, s2, 4"); a("s_add_u32 s56, s56, s58"); a(f"s_add_u32 s56, s56, {YINB - (1 << 18)}")
    a("s_add_u32 s58, s56, 131072")
    if wo_at > 0: ldsspin("L_wv", [f"ds_read_b32 v12, v19 offset:{LVF}"], 12, 4)
    stamp(5)
    a(f"s_mov_b32 s57, {SPIN}")
    WOB = 64
    for cbb in range(2):
        if cbb == 1: a("s_cmp_eq_u32 s7, 3"); a("s_cbranch_scc1 L_hy_b4")
        for st in range(6):
            k, half = st % 3, st // 3
            r = WOB + 24 * cbb + 4 * st
            a(f"buffer_load_dwordx4 v[{r}:{r+3}], v6, {WO}, s{52+k} offen offset:{1280*half+256*cbb}{WF}")
    a("L_hy_b4:")
    a("s_barrier")
    stamp(6)
    a("L_pollo:")
    a(f"buffer_load_dwordx4 v[12:15], v10, {WS}, s55 offen sc1")
    a("s_sub_u32 s57, s57, 1"); a("s_cbranch_scc1 L_pollo_done")
    a("s_waitcnt vmcnt(0)")
    a(f"v_cmp_ne_u32 vcc, s{TAG}, v15")
    a("s_cbranch_vccnz L_pollo")
    a("L_pollo_done:")
    a("s_waitcnt vmcnt(0)")
    stamp(7)
    for st in range(3):
        for i in range(3): a(f"v_add_f32_dpp v{12+i}, v{12+i}, v{12+i} {DP[st]} row_mask:0xf bank_mask:0xf")
    for i in range(3): a(f"v_cvt_pk_bf16_f32 v{12+i}, v{12+i}, v{12+i}")
    for st in range(6):
        k, half = st % 3, st // 3
        T = 28 + 4 * (st & 1)
        for r in range(4):
            if half == 0: a(f"v_and_b32 v{T+r}, v{12+k}, v{24+r}")
            else: a(f"v_and_b32_dpp v{T+r}, v{12+k}, v{24+r} row_ror:8 row_mask:0xf bank_mask:0xf")
        for cbb in range(2):
            r = WOB + 24 * cbb + 4 * st; c = f"v[{16+20*cbb}:{19+20*cbb}]"
            a(f"v_mfma_f32_16x16x32_bf16 {c}, v[{T}:{T+3}], v[{r}:{r+3}], " + ("0" if st == 0 else c))
    a("s_mov_b32 exec_hi, 0")
    for i in range(4): a(f"v_and_or_b32 v{16+i}, v{16+i}, v23, s{TAG+1+i}")
    a(f"buffer_store_dwordx4 v[16:19], v11, {WS}, s56 offen sc1")
    a("s_cmp_eq_u32 s7, 3"); a("s_cbranch_scc1 L_fin")
    for i in range(4): a(f"v_and_or_b32 v{36+i}, v{36+i}, v23, s{TAG+1+i}")
    a(f"buffer_store_dwordx4 v[36:39], v11, {WS}, s58 offen sc1")
    stamp(8)
    a("L_fin:")
    dump_stamps()
    a("L_end:"); a("s_endpgm")
    a.raw('.section .rodata,"a"'); a.raw(".p2align 6"); a.raw(f".amdhsa_kernel {KN}")
    a.raw("  .amdhsa_next_free_vgpr 168"); a.raw(f"  .amdhsa_next_free_sgpr {96 if stamps else 70}"); a.raw("  .amdhsa_accum_offset 168")
    a.raw("  .amdhsa_group_segment_fixed_size 0"); a.raw("  .amdhsa_kernarg_size 96"); a.raw("  .amdhsa_user_sgpr_count 2")
    a.raw("  .amdhsa_user_sgpr_kernarg_segment_ptr 1"); a.raw("  .amdhsa_system_sgpr_workgroup_id_x 1"); a.raw(".end_amdhsa_kernel")
    return a.finish()
AB = 20

if __name__ == "__main__":
    ap = argparse.ArgumentParser()
    ap.add_argument("out"); ap.add_argument("--nont", action="store_true"); ap.add_argument("--D", type=int, default=6)
    ap.add_argument("--D2", type=int, default=None)
    ap.add_argument("--nv1", type=int, default=4); ap.add_argument("--stamps", action="store_true"); ap.add_argument("--qk", type=int, default=2)
    ap.add_argument("--nontw", action="store_true"); ap.add_argument("--woat", type=int, default=24)
    ap.add_argument("--slq", type=int, default=8); ap.add_argument("--slml", type=int, default=8)
    ap.add_argument("--sly0", type=int, default=8); ap.add_argument("--hfirst", action="store_true"); ap.add_argument("--nowarm", action="store_true")
    ap.add_argument("--hearly", action="store_true"); ap.add_argument("--bar", default="A")
    x = ap.parse_args()
    open(x.out, "w").write(gen(nt=not x.nont, D=x.D, nv1=x.nv1, stamps=x.stamps, qk_every=x.qk, ntw=not x.nontw, slq=x.slq,
                               slml=x.slml, sly0=x.sly0, wo_at=x.woat, D2=x.D2, hfirst=x.hfirst, warm=not x.nowarm, hearly=x.hearly, bar=x.bar))
```

```python
import sys, argparse
from asmlib import Asm
KN = "parallel_sum__mha_block_cached__glu_gated_glu__decode_kernel"
HDR = open("parallel_sum__mha_block_cached__glu_gated_glu__decode.s.ref").read().split("; Override launch geometry")[0]

QPUB = 0x010000
GPUB = 0x060000
MLPUB = 0x080000
OINB = 0x100000
BINB = 0x180000
YINB = 0x240000
STAMP = 0x400000
LQ, LH, LF1, LQF, LSF, LMF, LVF, LKF, LSC, LP1, LO = 0, 384, 512, 528, 532, 544, 576, 608, 1024, 1536, 7680
LDS = LO + 16 * 768
SPIN = 1 << 15
LSPIN = 1 << 18
TAG = 64

def gen(o):
    D = o.D; D2 = o.D2; nv1 = o.nv1; stamps = o.stamps; qk_every = o.qk; wo_at = o.woat
    a = Asm()
    KVF = "" if o.nont else " nt"
    WF = "" if o.nontw else " nt"
    a.raw(HDR.rstrip())
    a.raw(f"; @launch grid=(256,1,1) block=(768,1,1) lds={LDS}")
    a.raw('.amdgcn_target "amdgcn-amd-amdhsa--gfx950"')
    a.raw(".text"); a.raw(f".globl {KN}"); a.raw(".p2align 8"); a.raw(f".type {KN},@function"); a.raw(f"{KN}:")
    def stamp(i):
        if stamps: a(f"s_memrealtime s[{70+2*i}:{71+2*i}]")
    def dump_stamps(n=12):
        if not stamps: return
        a("s_mov_b64 exec, 1")
        a("s_waitcnt lgkmcnt(0)")
        a("s_mul_i32 s52, s2, 12"); a("s_add_u32 s52, s52, s3"); a("s_lshl_b32 s52, s52, 7"); a(f"s_add_u32 s52, s52, {STAMP}")
        a("v_mov_b32 v1, 0")
        for i in range(n):
            a(f"v_mov_b32 v2, s{70+2*i}"); a(f"v_mov_b32 v3, s{71+2*i}")
            a(f"buffer_store_dwordx2 v[2:3], v1, s[48:51], s52 offen offset:{8*i}")
    def srd_ld(base, karg): a(f"s_load_dwordx2 s[{base}:{base+1}], s[0:1], {karg}")
    def srd_c(base, size): a(f"s_mov_b32 s{base+2}, {size}"); a(f"s_mov_b32 s{base+3}, 0x20000")
    def srd(base, karg, size): srd_ld(base, karg); srd_c(base, size)
    X, K, V, WQ, WO, GA, UP, DN, OUT, DBG, WS = [f"s[{8+4*i}:{11+4*i}]" for i in range(11)]
    def mktag():
        a(f"s_mul_i32 s{TAG}, s{TAG}, 1664525"); a(f"s_add_u32 s{TAG}, s{TAG}, 1013904223")
    def mktagbytes():
        for i in range(4): a(f"s_bfe_u32 s{TAG+1+i}, s{TAG}, {(8 << 16) | (8 * i)}")
    def masks(M, t0, t1):
        a(f"v_and_b32 v{t0}, 1, v2"); a(f"v_lshlrev_b32 v{t0}, 4, v{t0}")
        a(f"v_mov_b32 v{t1}, 0xffff"); a(f"v_lshlrev_b32 v{t0}, v{t0}, v{t1}")
        a(f"v_lshrrev_b32 v{t1}, 1, v2")
        for r in range(4):
            a(f"v_cmp_eq_u32 vcc, {r}, v{t1}")
            a(f"v_cndmask_b32 v{M+r}, 0, v{t0}, vcc")
    DP = ("quad_perm:[1,0,3,2]", "quad_perm:[2,3,0,1]", "row_half_mirror")
    def wave_reduce(op, v, full=True):
        if full:
            for m in DP: a(f"{op}_dpp v{v}, v{v}, v{v} {m} row_mask:0xf bank_mask:0xf")
        a(f"{op}_dpp v{v}, v{v}, v{v} row_ror:8 row_mask:0xf bank_mask:0xf")
        a(f"{op}_dpp v{v}, v{v}, v{v} row_bcast:15 row_mask:0xa bank_mask:0xf")
        a(f"{op}_dpp v{v}, v{v}, v{v} row_bcast:31 row_mask:0xc bank_mask:0xf")
    def rowaddr(dst, t, rowbytes, swave):
        a(f"v_lshrrev_b32 v{dst}, 5, v0"); a(f"v_mul_u32_u24 v{dst}, {rowbytes}, v{dst}"); a(f"v_lshl_add_u32 v{dst}, v2, 5, v{dst}")
        a(f"v_and_b32 v{t}, 16, v0"); a(f"v_add_u32 v{dst}, v{dst}, v{t}")
        a(f"s_mul_i32 s57, {swave}, {2*rowbytes}"); a(f"v_add_u32 v{dst}, s57, v{dst}")
    def rowexec(): a("s_mov_b32 exec_lo, 0x00ff00ff"); a("s_mov_b32 exec_hi, 0xff00ff00")
    def ldsspin(name, reads, flagreg, sleep):
        a(f"s_mov_b32 s57, {LSPIN}")
        a(f"{name}:")
        for r in reads: a(r)
        a(f"s_sub_u32 s57, s57, 1"); a(f"s_cbranch_scc1 {name}_done")
        a("s_waitcnt lgkmcnt(0)")
        a(f"v_cmp_eq_u32 vcc, 0, v{flagreg}")
        a(f"s_cbranch_vccz {name}_done")
        a(f"s_sleep {sleep}")
        a(f"s_branch {name}")
        a(f"{name}_done:")
        a("s_waitcnt lgkmcnt(0)")
    def poll(name, nsets, nl, issue, check, post, delay, sleep=0):
        a(f"s_mov_b32 s57, {SPIN}")
        for i in range(nsets):
            issue(i)
            if i < nsets - 1 and delay: a(f"s_sleep {delay}")
        a(f"{name}:")
        for i in range(nsets):
            check(i, lambda t: a(f"s_waitcnt vmcnt({(nsets-1)*nl + nl-1-t})"))
            a(f"s_cbranch_vccz {name}_d{i}")
            if sleep: a(f"s_sleep {sleep}")
            issue(i)
        a("s_sub_u32 s57, s57, 1"); a(f"s_cbranch_scc0 {name}")
        a("s_waitcnt vmcnt(0)")
        for i in range(nsets):
            a(f"{name}_d{i}:")
            a("s_nop 1")
            post(i)
            if i < nsets - 1: a(f"s_branch {name}_done")
        a(f"{name}_done:")
        a("s_nop 1")
    WB = 64; AB = 20

    a("L_start:")
    a("s_cmp_ge_u32 s2, 256"); a("s_cbranch_scc1 L_end")
    srd_ld(48, 88)
    if stamps:
        for i in range(12): a(f"s_mov_b64 s[{70+2*i}:{71+2*i}], 0")
    stamp(0)
    a("v_lshrrev_b32 v1, 6, v0")
    a("s_bfe_u32 s5, s2, 0x30003")
    a("v_readfirstlane_b32 s3, v1")
    a("s_and_b32 s60, s2, 7"); a("s_lshr_b32 s61, s2, 6")
    a("s_lshl_b32 s4, s60, 2"); a("s_add_u32 s4, s4, s61")
    srd_c(48, 0x10000000)
    a("s_sub_u32 s7, s3, 4"); a("s_cbranch_scc0 L_stream")
    a("s_setprio 3")
    srd(8, 0, 1280)
    a("v_and_b32 v0, 63, v0"); a("v_lshrrev_b32 v1, 3, v0"); a("v_and_b32 v2, 7, v0")
    a("s_mov_b32 s7, s3")
    a("v_mul_u32_u24 v4, 20, v0")
    a("v_mul_u32_u24 v5, 20, v1")
    a("s_cmp_ge_u32 s5, 6"); a("s_cbranch_scc1 L_hB")
    srd(20, 24, 7864320)
    a("s_and_b32 s52, s5, 1"); a("s_mul_i32 s52, s52, 320"); a("s_mul_i32 s53, s7, 80"); a("s_add_u32 s55, s52, s53")
    a("v_mul_u32_u24 v3, 122880, v1"); a("v_lshl_add_u32 v3, v2, 4, v3")
    a("s_mul_i32 s52, s55, 12288"); a("s_mul_i32 s53, s4, 384"); a("s_add_u32 s52, s52, s53")
    a("s_lshr_b32 s53, s5, 1"); a("s_lshl_b32 s53, s53, 7"); a("s_add_u32 s52, s52, s53")
    a("s_lshl_b32 s55, s55, 1")
    def xloads():
        a(f"buffer_load_dwordx4 v[8:11], v4, {X}, 0 offen")
        a(f"buffer_load_dword v12, v4, {X}, 0 offen offset:16")
        a(f"buffer_load_dwordx4 v[14:17], v5, {X}, s55 offen")
        a(f"buffer_load_dword v18, v5, {X}, s55 offen offset:16")
    a("s_waitcnt lgkmcnt(0)")
    xloads()
    for r in range(10):
        a(f"buffer_load_dwordx4 v[{WB+4*r}:{WB+4*r+3}], v3, {WQ}, s52 offen{WF}")
        if r < 9: a("s_add_u32 s52, s52, 12288")
    a("s_branch L_hinit")
    a("L_hB:")
    a("s_bitcmp1_b32 s5, 0"); a("s_cbranch_scc1 L_hBu")
    srd_ld(20, 48); a("s_branch L_hB2")
    a("L_hBu:")
    srd_ld(20, 56)
    a("L_hB2:")
    srd_c(20, 1966080)
    a("s_mul_i32 s52, s61, 160"); a("s_lshr_b32 s53, s7, 1"); a("s_mul_i32 s53, s53, 80"); a("s_add_u32 s55, s52, s53")
    a("s_and_b32 s53, s7, 1"); a("s_mul_i32 s53, s53, 5"); a("s_add_u32 s52, s55, s53")
    a("v_mul_u32_u24 v3, 30720, v1"); a("v_lshl_add_u32 v3, v2, 4, v3")
    a("s_mul_i32 s52, s52, 3072"); a("s_mul_i32 s53, s60, 384"); a("s_add_u32 s52, s52, s53")
    a("s_lshl_b32 s55, s55, 1")
    a("s_waitcnt lgkmcnt(0)")
    xloads()
    for r in range(5):
        for k in range(3):
            i = 3 * r + k
            a(f"buffer_load_dwordx4 v[{WB+4*i}:{WB+4*i+3}], v3, {WQ}, s52 offen offset:{128*k}{WF}")
        if r < 4: a("s_add_u32 s52, s52, 3072")
    a("L_hinit:")
    if o.bar == 'C': a("s_barrier")
    a(f"s_load_dword s{TAG}, s[48:49], 0")
    stamp(1)
    srd(24, 32, 7864320); srd(36, 64, 1966080); srd(40, 72, 1280)
    a("s_lshl_b32 s6, s4, 3"); a("s_add_u32 s6, s6, s5")
    masks(24, 6, 7)
    rowaddr(20, 21, 256, "s7")
    a("v_lshlrev_b32 v21, 2, v0")
    a("v_lshlrev_b32 v22, 3, v0")
    a("s_lshl_b32 s58, s7, 2"); a("v_mov_b32 v19, s58")
    a("v_and_b32 v23, 12, v21")
    a("v_mov_b32 v7, 1")
    a("s_waitcnt vmcnt(15)")
    a("s_cmp_ge_u32 s5, 6"); a("s_cbranch_scc1 L_hx")
    a("s_waitcnt vmcnt(10)")
    a("L_hx:")
    for i in range(5):
        a(f"v_lshlrev_b32 v{28+2*i}, 16, v{8+i}"); a(f"v_and_b32 v{29+2*i}, 0xffff0000, v{8+i}")
    a("v_add_f32 v38, v28, v29")
    for i in range(2, 10): a(f"v_add_f32 v38, v38, v{28+i}")
    wave_reduce("v_add_f32", 38)
    a("v_readlane_b32 s56, v38, 63")
    a("v_mov_b32 v39, 0x3acccccd")
    a("v_mul_f32 v39, s56, v39")
    for i in range(10): a(f"v_sub_f32 v{28+i}, v{28+i}, v39")
    a("v_mul_f32 v38, v28, v28")
    for i in range(1, 10): a(f"v_fmac_f32 v38, v{28+i}, v{28+i}")
    wave_reduce("v_add_f32", 38)
    a("v_readlane_b32 s56, v38, 63")
    a("v_mov_b32 v38, 0x3acccccd")
    a("v_mul_f32 v38, s56, v38")
    a("v_cvt_pk_bf16_f32 v38, v38, v39")
    a("v_and_b32 v39, 0xffff0000, v38")
    a("v_lshlrev_b32 v38, 16, v38")
    a("v_add_f32 v38, 0x3727c5ac, v38")
    a("v_cvt_pk_bf16_f32 v38, v38, v38")
    a("v_lshlrev_b32 v38, 16, v38")
    a("v_sqrt_f32 v38, v38")
    a("v_cvt_pk_bf16_f32 v38, v38, v38")
    a("v_lshlrev_b32 v38, 16, v38")
    a("v_rcp_f32 v38, v38")
    for i in range(5):
        a(f"v_lshlrev_b32 v{28+2*i}, 16, v{14+i}"); a(f"v_and_b32 v{29+2*i}, 0xffff0000, v{14+i}")
    for i in range(10): a(f"v_sub_f32 v{28+i}, v{28+i}, v39")
    for i in range(5):
        a(f"v_cvt_pk_bf16_f32 v{8+i}, v{28+2*i}, v{29+2*i}")
    for i in range(5):
        a(f"v_lshlrev_b32 v{28+2*i}, 16, v{8+i}"); a(f"v_and_b32 v{29+2*i}, 0xffff0000, v{8+i}")
    for i in range(10): a(f"v_mul_f32 v{28+i}, v{28+i}, v38")
    for i in range(10): a(f"v_cvt_pk_bf16_f32 v{28+i}, v{28+i}, v{28+i}")
    if o.bar == 'D': a("s_barrier")
    a("s_waitcnt lgkmcnt(0)")
    mktag(); mktagbytes()
    stamp(2)
    a("s_cmp_ge_u32 s5, 6"); a("s_cbranch_scc1 L_hmB")
    a(f"s_lshl_b32 s53, s6, 10"); a(f"s_add_u32 s53, s53, {QPUB}")
    for r in range(10):
        T = 52 + 4 * (r & 1)
        for i in range(4): a(f"v_and_b32 v{T+i}, v{28+r}, v{24+i}")
        a(f"s_waitcnt vmcnt({9-r})")
        a(f"v_mfma_f32_16x16x32_bf16 v[40:43], v[{T}:{T+3}], v[{WB+4*r}:{WB+4*r+3}], " + ("0" if r == 0 else "v[40:43]"))
    stamp(3)
    rowexec()
    a(f"ds_write_b128 v20, v[40:43] offset:{LP1}")
    a("s_branch L_hred")
    a("L_hmB:")
    a("s_lshl_b32 s53, s60, 3"); a("s_and_b32 s54, s5, 1"); a("s_lshl_b32 s54, s54, 2"); a("s_add_u32 s53, s53, s54"); a("s_add_u32 s53, s53, s61")
    a(f"s_lshl_b32 s53, s53, 11"); a(f"s_add_u32 s53, s53, {GPUB}")
    a("s_bitcmp0_b32 s7, 0"); a("s_cbranch_scc1 L_hmB2")
    for i in range(5): a(f"v_mov_b32 v{28+i}, v{33+i}")
    a("L_hmB2:")
    for r in range(5):
        T = 52 + 4 * (r & 1)
        for i in range(4): a(f"v_and_b32 v{T+i}, v{28+r}, v{24+i}")
        a(f"s_waitcnt vmcnt({12-3*r})")
        for k in range(3):
            i = 3 * r + k; c = f"v[{40+4*k}:{43+4*k}]"
            a(f"v_mfma_f32_16x16x32_bf16 {c}, v[{T}:{T+3}], v[{WB+4*i}:{WB+4*i+3}], " + ("0" if r == 0 else c))
    stamp(3)
    rowexec()
    for k in range(3): a(f"ds_write_b128 v20, v[{40+4*k}:{43+4*k}] offset:{LP1+2048*k}")
    a("L_hred:")
    a("s_mov_b64 exec, -1")
    a(f"ds_write_b32 v19, v7 offset:{LF1}")
    a(f"ds_read_b32 v8, v23 offset:{LF1}")
    for i in range(4):
        a(f"ds_read2st64_b32 v[{40+2*i}:{41+2*i}], v21 offset0:{LP1//256+2*i} offset1:{LP1//256+2*i+1}")
    a("s_waitcnt lgkmcnt(0)")
    a(f"v_cmp_eq_u32 vcc, 0, v8")
    a("s_cbranch_vccnz L_hnopub")
    def pub(r, off):
        a(f"v_pk_add_f32 v[{r}:{r+1}], v[{r}:{r+1}], v[{r+2}:{r+3}]"); a(f"v_pk_add_f32 v[{r+4}:{r+5}], v[{r+4}:{r+5}], v[{r+6}:{r+7}]")
        a(f"v_pk_add_f32 v[{r}:{r+1}], v[{r}:{r+1}], v[{r+4}:{r+5}]"); a(f"v_add_f32 v{r}, v{r}, v{r+1}"); a(f"v_mov_b32 v{r+1}, s{TAG}")
        a(f"buffer_store_dwordx2 v[{r}:{r+1}], v22, {WS}, s53 offen offset:{off} sc1")
    pub(40, 0)
    a("s_cmp_lt_u32 s5, 6"); a("s_cbranch_scc1 L_hnopub")
    for i in range(4, 12):
        a(f"ds_read2st64_b32 v[{40+2*i}:{41+2*i}], v21 offset0:{LP1//256+2*i} offset1:{LP1//256+2*i+1}")
    a("s_waitcnt lgkmcnt(0)")
    pub(48, 512); pub(56, 1024)
    a("L_hnopub:")
    stamp(4)
    a("v_and_b32 v19, 28, v21")
    a("s_cmp_lg_u32 s7, 0"); a("s_cbranch_scc1 L_hy")

    a("v_lshrrev_b32 v6, 5, v0"); a("v_and_b32 v8, 31, v0"); a("v_lshlrev_b32 v6, 10, v6"); a("v_lshl_add_u32 v6, v8, 4, v6")
    a(f"s_lshl_b32 s53, s4, 13"); a(f"s_add_u32 s53, s53, {QPUB}"); a("s_add_u32 s54, s53, 4096")
    a("v_mov_b32 v8, 0")
    if o.slq0: a(f"s_sleep {o.slq0}")
    def q_issue(i):
        b = 64 + 12 * i
        a(f"buffer_load_dwordx4 v[{b}:{b+3}], v6, {WS}, s53 offen sc1")
        a(f"buffer_load_dwordx4 v[{b+4}:{b+7}], v6, {WS}, s53 offen offset:2048 sc1")
        a(f"buffer_load_dwordx4 v[{b+8}:{b+11}], v6, {WS}, s54 offen sc1")
    def q_check(i, wait):
        b = 64 + 12 * i
        wait(2)
        for t in range(6): a(f"v_xor_b32 v{b+1+2*t}, s{TAG}, v{b+1+2*t}")
        a(f"v_or3_b32 v{b+1}, v{b+1}, v{b+3}, v{b+5}"); a(f"v_or3_b32 v{b+7}, v{b+7}, v{b+9}, v{b+11}"); a(f"v_or_b32 v{b+1}, v{b+1}, v{b+7}")
        a(f"v_cmp_ne_u32 vcc, 0, v{b+1}")
    def q_post(i):
        b = 64 + 12 * i
        for t in range(6): a(f"v_permlane32_swap_b32 v{b+2*t}, v{b+1+2*t}")
        for t in range(6): a(f"v_add_f32 v{40+t}, v{b+2*t}, v{b+1+2*t}")
    poll("L_pq", o.nq, 3, q_issue, q_check, q_post, o.dq, o.slq)
    stamp(5)
    for k in range(3): a(f"v_cvt_pk_bf16_f32 v{40+2*k}, v{40+2*k}, v{41+2*k}")
    a("s_mov_b32 exec_hi, 0")
    for k in range(3): a(f"ds_write_b32 v21, v{40+2*k} offset:{LQ+128*k}")
    a(f"ds_write_b32 v8, v7 offset:{LQF}")
    a("s_mov_b32 exec_hi, -1")
    a("v_lshlrev_b32 v6, 4, v0")
    a("v_bfe_u32 v10, v0, 2, 1"); a("v_bfe_u32 v9, v0, 3, 1"); a("v_lshl_add_u32 v10, v10, 1, v9"); a("v_lshlrev_b32 v10, 1, v10")
    a("s_lshl_b32 s58, s2, 3")
    a(f"buffer_load_ushort v9, v10, {X}, s58 offen")
    def red4(r, t):
        a(f"v_add_f32_dpp v{t}, v{r}, v{r} row_ror:8 row_mask:0xf bank_mask:0x3")
        a(f"v_add_f32_dpp v{t+1}, v{r+2}, v{r+2} row_ror:8 row_mask:0xf bank_mask:0x3")
        a(f"v_add_f32_dpp v{t}, v{r+1}, v{r+1} row_ror:8 row_mask:0xf bank_mask:0xc")
        a(f"v_add_f32_dpp v{t+1}, v{r+3}, v{r+3} row_ror:8 row_mask:0xf bank_mask:0xc")
        a(f"v_add_f32_dpp v{t+2}, v{t}, v{t} row_half_mirror row_mask:0xf bank_mask:0x5")
        a(f"v_add_f32_dpp v{t+2}, v{t+1}, v{t+1} row_half_mirror row_mask:0xf bank_mask:0xa")
        a(f"v_add_f32_dpp v{t+2}, v{t+2}, v{t+2} quad_perm:[1,0,3,2] row_mask:0xf bank_mask:0xf")
        a(f"v_add_f32_dpp v{t+2}, v{t+2}, v{t+2} quad_perm:[2,3,0,1] row_mask:0xf bank_mask:0xf")
        a(f"v_mov_b32 v{t}, v{t+2}")
        a(f"v_permlane32_swap_b32 v{t}, v{t+1}")
        a(f"v_add_f32 v{t+2}, v{t+2}, v{t+1}")
        a(f"v_mov_b32 v{t}, v{t+2}")
        a(f"v_permlane16_swap_b32 v{t}, v{t+1}")
        a(f"v_add_f32 v{t+2}, v{t+2}, v{t+1}")
    a(f"s_lshl_b32 s53, s4, 10"); a(f"s_add_u32 s53, s53, {MLPUB}")
    a("v_lshlrev_b32 v11, 10, v1"); a("v_lshl_add_u32 v11, v2, 4, v11")
    a("s_lshl_b32 s54, s4, 13"); a("s_lshl_b32 s55, s5, 7"); a("s_add_u32 s54, s54, s55"); a(f"s_add_u32 s54, s54, {OINB}")
    ldsspin("L_wml", [f"ds_read_b32 v12, v19 offset:{LMF}"], 12, 4)
    stamp(6)
    if o.slml0: a(f"s_sleep {o.slml0}")
    def ml_issue(i): a(f"buffer_load_dwordx3 v[{112+4*i}:{114+4*i}], v6, {WS}, s53 offen sc1")
    def ml_check(i, wait): wait(0); a(f"v_cmp_ne_u32 vcc, s{TAG}, v{114+4*i}")
    def ml_post(i):
        a(f"v_mov_b32 v12, v{112+4*i}"); a(f"v_mov_b32 v14, v{112+4*i}"); a(f"v_mov_b32 v13, v{113+4*i}")
    poll("L_pml", o.nml, 1, ml_issue, ml_check, ml_post, o.dml, o.slml)
    stamp(7)
    wave_reduce("v_max_f32", 14)
    a("v_readlane_b32 s56, v14, 63")
    a("v_subrev_f32 v12, s56, v12")
    a("v_mul_f32 v12, 0x3fb8aa3b, v12")
    a("v_exp_f32 v12, v12")
    a("v_mul_f32 v13, v13, v12")
    wave_reduce("v_add_f32", 13)
    a("v_rcp_f32 v13, v13")
    a("v_readlane_b32 s56, v13, 63")
    a("v_mul_f32 v12, s56, v12")
    a(f"ds_write_b32 v21, v12 offset:{LSC}")
    a(f"ds_write_b32 v8, v7 offset:{LSF}")
    a(f"s_lshl_b32 s53, s2, 12"); a(f"s_add_u32 s55, s53, {BINB}"); a(f"s_add_u32 s53, s53, {YINB}")
    a("v_lshlrev_b32 v9, 16, v9")
    a(f"v_mov_b32 v63, s{TAG}")
    stamp(8)
    a("s_barrier")
    stamp(9)
    for i in range(24):
        k = i % 3; rp = i // 3
        a(f"ds_read2st64_b32 v[{64+2*i}:{65+2*i}], v21 offset0:{LO//256+6*rp+k} offset1:{LO//256+6*rp+3+k}")
    for rp in range(1, 8):
        a(f"s_waitcnt lgkmcnt({min(15, 21-3*rp)})")
        for k in range(3): a(f"v_pk_add_f32 v[{64+2*k}:{65+2*k}], v[{64+2*k}:{65+2*k}], v[{64+6*rp+2*k}:{65+6*rp+2*k}]")
    for k in range(3): a(f"v_add_f32 v{60+k}, v{64+2*k}, v{65+2*k}")
    a(f"buffer_store_dwordx4 v[60:63], v11, {WS}, s54 offen sc1")
    stamp(10)
    a("s_cmp_ge_u32 s2, 160"); a("s_cbranch_scc1 L_fin")
    def tb_issue(base, n, so):
        def f(i):
            for t in range(n): a(f"buffer_load_dwordx4 v[{base+4*n*i+4*t}:{base+4*n*i+4*t+3}], v6, {WS}, {so} offen offset:{1024*t} sc1")
        return f
    def tb_check(base, n):
        def f(i, wait):
            b0 = base + 4 * n * i
            for t in range(n):
                wait(t)
                b = b0 + 4 * t
                for e in range(4): a(f"v_xor_b32 v{b+e}, s{TAG+1+e}, v{b+e}")
                if t == 0:
                    a(f"v_or3_b32 v14, v{b}, v{b+1}, v{b+2}"); a(f"v_or_b32 v14, v14, v{b+3}")
                else:
                    a(f"v_or3_b32 v14, v14, v{b}, v{b+1}"); a(f"v_or3_b32 v14, v14, v{b+2}, v{b+3}")
                    s0 = b0 if t == 1 else 40
                    a(f"v_pk_add_f32 v[40:41], v[{s0}:{s0+1}], v[{b}:{b+1}]"); a(f"v_pk_add_f32 v[42:43], v[{s0+2}:{s0+3}], v[{b+2}:{b+3}]")
            a("v_and_b32 v14, 0xff, v14")
            a("v_cmp_ne_u32 vcc, 0, v14")
        return f
    poll("L_pb", 1, 3, tb_issue(64, 3, "s55"), tb_check(64, 3), lambda i: None, 0, o.slb)
    red4(40, 44)
    a("v_cvt_pk_bf16_f32 v15, v46, v46")
    a("v_lshlrev_b32 v15, 16, v15")
    if o.sly0: a(f"s_sleep {o.sly0}")
    poll("L_py", o.ny, 4, tb_issue(64, 4, "s53"), tb_check(64, 4), lambda i: None, o.dy, o.sly)
    red4(40, 44)
    a("v_cvt_pk_bf16_f32 v46, v46, v46"); a("v_lshlrev_b32 v46, 16, v46")
    a("v_add_f32 v46, v46, v9")
    a("v_cvt_pk_bf16_f32 v46, v46, v46"); a("v_lshlrev_b32 v46, 16, v46")
    a("v_add_f32 v46, v46, v15")
    a("v_cvt_pk_bf16_f32 v46, v46, v46")
    a("s_mov_b64 exec, 0x1111")
    a(f"buffer_store_short v46, v10, {OUT}, s58 offen")
    stamp(11)
    a("s_cmp_lg_u32 s2, 0"); a("s_cbranch_scc1 L_fin")
    a("s_mov_b64 exec, 1")
    a(f"buffer_store_dword v63, v8, {WS}, 0 offen sc1")
    a("s_branch L_fin")

    a("L_hy:")
    a("v_and_b32 v10, 8, v0"); a("v_cmp_eq_u32 vcc, 0, v10")
    for r in range(4): a(f"v_cndmask_b32 v{24+r}, 0, v{24+r}, vcc")
    a("v_lshrrev_b32 v4, 4, v0"); a("v_and_b32 v5, 15, v0")
    a("v_mov_b32 v23, 0xffffff00")
    a("v_bfe_u32 v11, v0, 4, 1"); a("v_lshl_add_u32 v11, v5, 1, v11"); a("v_lshlrev_b32 v11, 12, v11")
    a("v_mul_u32_u24 v6, 2560, v4"); a("v_lshl_add_u32 v6, v5, 4, v6")
    a("s_cmp_eq_u32 s7, 3"); a("s_cselect_b32 s59, s5, 6")
    a("s_cmp_ge_u32 s59, 6"); a("s_cbranch_scc1 L_hy_b2")
    a("v_lshlrev_b32 v8, 11, v1"); a("v_lshl_add_u32 v8, v2, 3, v8")
    a("s_lshl_b32 s53, s60, 14"); a("s_mul_i32 s54, s61, 384"); a("s_add_u32 s53, s53, s54"); a("s_lshl_b32 s54, s5, 6"); a("s_add_u32 s53, s53, s54")
    a(f"s_add_u32 s53, s53, {GPUB}")
    a("v_lshlrev_b32 v7, 3, v4")
    if o.slg0: a(f"s_sleep {o.slg0}")
    poll("L_pg", 1, 1, lambda i: a(f"buffer_load_dwordx2 v[12:13], v8, {WS}, s53 offen sc1"),
         lambda i, wait: (wait(0), a(f"v_cmp_ne_u32 vcc, s{TAG}, v13")), lambda i: None, 0, 16)
    a("v_add_f32_dpp v12, v12, v12 row_ror:8 row_mask:0xf bank_mask:0xf")
    a("v_mov_b32 v13, v12")
    a("v_permlane16_swap_b32 v13, v14")
    a("v_add_f32 v12, v12, v14")
    a("v_mov_b32 v14, v12")
    a("v_permlane32_swap_b32 v14, v13")
    a("v_cvt_pk_bf16_f32 v12, v12, v13")
    a("v_and_b32 v13, 0xffff0000, v12")
    a("v_lshlrev_b32 v12, 16, v12")
    a("v_mul_f32 v12, 0xbfb8aa3b, v12")
    a("v_exp_f32 v12, v12")
    a("v_add_f32 v12, 1.0, v12")
    a("v_rcp_f32 v12, v12")
    a("v_cvt_pk_bf16_f32 v12, v12, v12")
    a("v_lshlrev_b32 v12, 16, v12")
    a("v_mul_f32 v12, v12, v13")
    a("v_cvt_pk_bf16_f32 v12, v12, v12")
    a("s_mov_b64 exec, 0xff")
    a(f"ds_write_b32 v21, v12 offset:{LH}")
    a("s_mov_b64 exec, -1")
    a(f"ds_read_b64 v[8:9], v7 offset:{LH}")
    a("L_hy_b2:")
    a("s_mul_i32 s52, s4, 245760"); a("s_mul_i32 s53, s5, 10240"); a("s_add_u32 s52, s52, s53")
    a("s_mul_i32 s62, s4, 61440"); a("s_add_u32 s62, s62, s53")
    a("s_lshl_b32 s53, s7, 9"); a("s_add_u32 s52, s52, s53"); a("s_sub_u32 s52, s52, 512")
    a("s_add_u32 s53, s52, 81920"); a("s_add_u32 s54, s52, 163840")
    a("v_lshlrev_b32 v10, 7, v2"); a("v_lshl_add_u32 v10, v1, 4, v10")
    a(f"s_lshl_b32 s55, s6, 10"); a(f"s_add_u32 s55, s55, {OINB}")
    a("s_lshl_b32 s56, s7, 18"); a("s_lshl_b32 s58, s2, 4"); a("s_add_u32 s56, s56, s58"); a(f"s_add_u32 s56, s56, {YINB - (1 << 18)}")
    a("s_add_u32 s58, s56, 131072")
    a("s_mul_i32 s63, s4, 6"); a("s_add_u32 s63, s63, s5"); a("s_lshl_b32 s63, s63, 4"); a(f"s_add_u32 s63, s63, {BINB}")
    ldsspin("L_wv", [f"ds_read_b32 v12, v19 offset:{LVF}"], 12, 4)
    stamp(5)
    WOB = 64; DB = 112
    def wold(cbb):
        for st in range(6):
            k, half = st % 3, st // 3
            r = WOB + 24 * cbb + 4 * st
            a(f"buffer_load_dwordx4 v[{r}:{r+3}], v6, {WO}, s{52+k} offen offset:{1280*half+256*cbb}{WF}")
    a("s_cmp_ge_u32 s59, 6"); a("s_cbranch_scc1 L_hy_nod")
    for rho in range(2):
        for cb in range(5):
            r = DB + 4 * (5 * rho + cb)
            a(f"buffer_load_dwordx4 v[{r}:{r+3}], v6, {DN}, s62 offen offset:{1280*rho+256*cb}{WF}")
    wold(0)
    a("s_barrier")
    for rho in range(2):
        for r in range(4): a(f"v_and_b32 v{12+r}, v{8+rho}, v{24+r}")
        a(f"s_waitcnt vmcnt({11-5*rho})")
        for cb in range(5):
            r = DB + 4 * (5 * rho + cb); c = f"v[{28+4*cb}:{31+4*cb}]"
            a(f"v_mfma_f32_16x16x32_bf16 {c}, v[12:15], v[{r}:{r+3}], " + ("0" if rho == 0 else c))
    a("s_mov_b32 exec_hi, 0")
    for cb in range(5):
        for i in range(4): a(f"v_and_or_b32 v{28+4*cb+i}, v{28+4*cb+i}, v23, s{TAG+1+i}")
        a(f"buffer_store_dwordx4 v[{28+4*cb}:{31+4*cb}], v11, {WS}, s63 offen sc1")
        if cb < 4: a("s_add_u32 s63, s63, 131072")
    a("s_mov_b32 exec_hi, -1")
    a("s_branch L_hy_b5")
    a("L_hy_nod:")
    wold(0)
    a("s_cmp_eq_u32 s7, 3"); a("s_cbranch_scc1 L_hy_b4")
    wold(1)
    a("L_hy_b4:")
    a("s_barrier")
    a("L_hy_b5:")
    stamp(6)
    def o_post(i):
        b = 112 + 4 * i
        for e in range(3): a(f"v_add_f32_dpp v{12+e}, v{b+e}, v{b+e} {DP[0]} row_mask:0xf bank_mask:0xf")
    poll("L_po", o.no, 1, lambda i: a(f"buffer_load_dwordx4 v[{112+4*i}:{115+4*i}], v10, {WS}, s55 offen sc1"),
         lambda i, wait: (wait(0), a(f"v_cmp_ne_u32 vcc, s{TAG}, v{115+4*i}")), o_post, o.do, o.slo)
    stamp(7)
    for st in range(1, 3):
        for i in range(3): a(f"v_add_f32_dpp v{12+i}, v{12+i}, v{12+i} {DP[st]} row_mask:0xf bank_mask:0xf")
    for i in range(3): a(f"v_cvt_pk_bf16_f32 v{12+i}, v{12+i}, v{12+i}")
    for st in range(6):
        k, half = st % 3, st // 3
        T = 28 + 4 * (st & 1)
        for r in range(4):
            if half == 0: a(f"v_and_b32 v{T+r}, v{12+k}, v{24+r}")
            else: a(f"v_and_b32_dpp v{T+r}, v{12+k}, v{24+r} row_ror:8 row_mask:0xf bank_mask:0xf")
        for cbb in range(2):
            r = WOB + 24 * cbb + 4 * st; c = f"v[{16+20*cbb}:{19+20*cbb}]"
            a(f"v_mfma_f32_16x16x32_bf16 {c}, v[{T}:{T+3}], v[{r}:{r+3}], " + ("0" if st == 0 else c))
    a("s_mov_b32 exec_hi, 0")
    for i in range(4): a(f"v_and_or_b32 v{16+i}, v{16+i}, v23, s{TAG+1+i}")
    a(f"buffer_store_dwordx4 v[16:19], v11, {WS}, s56 offen sc1")
    a("s_cmp_eq_u32 s7, 3"); a("s_cbranch_scc1 L_fin")
    for i in range(4): a(f"v_and_or_b32 v{36+i}, v{36+i}, v23, s{TAG+1+i}")
    a(f"buffer_store_dwordx4 v[36:39], v11, {WS}, s58 offen sc1")
    stamp(8)
    a("L_fin:")
    dump_stamps()
    a("L_end:"); a("s_endpgm")

    a("L_stream:")
    srd(12, 8, 50331648); srd(16, 16, 50331648)
    if o.warm:
        a("s_getpc_b64 s[44:45]")
        a("L_pc:")
        a("s_sub_u32 s44, s44, L_pc-L_start"); a("s_subb_u32 s45, s45, 0")
        a("v_lshlrev_b32 v1, 7, v0"); a("v_subrev_u32 v1, 32768, v1")
        a("v_cmp_gt_u32 vcc, L_last-L_start, v1")
        a("s_and_saveexec_b64 s[46:47], vcc")
        a("s_cbranch_execz L_nowarm")
        a("global_load_dword v167, v1, s[44:45]")
        a("L_nowarm:")
        a("s_mov_b64 exec, -1")
    a("v_and_b32 v0, 63, v0"); a("v_lshrrev_b32 v1, 3, v0"); a("v_and_b32 v2, 7, v0")
    a("v_mov_b32 v29, 0"); a("v_lshlrev_b32 v28, 2, v0")
    a(f"ds_write_b32 v28, v29 offset:{LF1}")
    a("s_lshl_b32 s6, s4, 3"); a("s_add_u32 s6, s6, s5")
    a("v_mul_u32_u24 v3, 384, v1"); a("v_lshl_add_u32 v3, v2, 4, v3")
    a("s_mul_i32 s52, s6, 196608"); a("s_mul_i32 s53, s7, 24576"); a("s_add_u32 s52, s52, s53")
    a("s_add_u32 s53, s52, 6144"); a("s_add_u32 s54, s52, 12288"); a("s_add_u32 s55, s52, 18432")
    M = 4; S = 8; Q = 16; ACC = 16; POOL = 36
    NSLOT = (168 - POOL) // 4
    def slot(i): return f"v[{POOL+4*i}:{POOL+4*i+3}]"
    def kvoff(i):
        T, k = divmod(i, 3)
        return f"s{52 + T//2}", (T & 1) * 3072 + 128 * k
    ops = []
    def issue(name, text): ops.append(name); a(text)
    def wait_for(name):
        n = len(ops) - 1 - ops.index(name)
        a(f"s_waitcnt vmcnt({n})")
    def throttle(d):
        if len(ops) >= d: a(f"s_waitcnt vmcnt({d-1})")
    NX = NSLOT - 24
    vslot = {i: (24 + i if i < NX else i - NX) for i in range(24)}
    assert nv1 <= NX
    def ldK(i):
        so, off = kvoff(i); issue(f"K{i}", f"buffer_load_dwordx4 {slot(i)}, v3, {K}, {so} offen offset:{off}{KVF}")
    def ldV(i):
        so, off = kvoff(i); issue(f"V{i}", f"buffer_load_dwordx4 {slot(vslot[i])}, v3, {V}, {so} offen offset:{off}{KVF}")
        if i + 1 == wo_at: a(f"ds_write_b32 v32, v33 offset:{LVF}")
    masks(M, 30, 31)
    for T in range(8): a(f"v_mov_b32 v{S+T}, 0")
    a("v_lshlrev_b32 v28, 4, v2")
    a("s_lshl_b32 s56, s6, 7"); a("s_lshl_b32 s57, s7, 4"); a("s_add_u32 s56, s56, s57"); a(f"s_add_u32 s56, s56, {MLPUB}")
    rowaddr(30, 31, 768, "s7")
    a("s_lshl_b32 s57, s5, 5"); a("s_lshl_b32 s58, s7, 2"); a("s_add_u32 s57, s57, s58"); a("v_mov_b32 v31, s57")
    a("v_mov_b32 v32, s58"); a("v_mov_b32 v33, 1")
    if o.kprio: a(f"s_setprio {o.kprio}")
    a("s_waitcnt lgkmcnt(0)")
    for i in range(24):
        if i == o.pre:
            a("s_barrier")
            a(f"s_load_dword s{TAG}, s[48:49], 0")
            stamp(1)
        throttle(D); ldK(i)
    if o.kgate: a(f"ds_write_b32 v32, v33 offset:{LKF}")
    if o.kprio != o.vprio: a(f"s_setprio {o.vprio}")
    def kgate():
        a("v_lshlrev_b32 v35, 2, v2")
        ldsspin("L_kg", [f"ds_read_b32 v34, v35 offset:{LKF}"], 34, 2)
    if o.kgate == 1: kgate()
    for i in range(nv1): throttle(D); ldV(i)
    stamp(2)
    ldsspin("L_sq", [f"ds_read_b32 v34, v29 offset:{LQF}"] + [f"ds_read_b128 v[{Q+4*k}:{Q+4*k+3}], v28 offset:{LQ+128*k}" for k in range(3)], 34, 2)
    stamp(3)
    mktag()
    nextv = nv1
    def dppstep(T, st): a(f"v_add_f32_dpp v{S+T}, v{S+T}, v{S+T} {DP[st]} row_mask:0xf bank_mask:0xf")
    known = max(0, len(ops) - D)
    for T in range(8):
        if ops.index(f"K{3*T+2}") >= known: wait_for(f"K{3*T+2}")
        for k in range(3):
            for r in range(4):
                a(f"v_dot2c_f32_bf16 v{S+T}, v{POOL+4*(3*T+k)+r}, v{Q+4*k+r}")
            if T > 0: dppstep(T - 1, k)
        if T % qk_every == qk_every - 1 and nextv < 24 and (vslot[nextv] >= 24 or vslot[nextv] < 3 * (T + 1)):
            ldV(nextv); nextv += 1
    for st in range(3): dppstep(7, st)
    for T in range(0, 8, 2): a(f"v_cvt_pk_bf16_f32 v{Q+T}, v{S+T}, v{S+T+1}")
    for T in range(0, 8, 2):
        a(f"v_lshlrev_b32 v{S+T}, 16, v{Q+T}"); a(f"v_and_b32 v{S+T+1}, 0xffff0000, v{Q+T}")
    for T in range(8): a(f"v_mul_f32 v{S+T}, 0x3d93cd3a, v{S+T}")
    for T in range(0, 8, 2): a(f"v_cvt_pk_bf16_f32 v{Q+T}, v{S+T}, v{S+T+1}")
    for T in range(0, 8, 2):
        a(f"v_lshlrev_b32 v{S+T}, 16, v{Q+T}"); a(f"v_and_b32 v{S+T+1}, 0xffff0000, v{Q+T}")
    a(f"v_max3_f32 v{Q}, v{S}, v{S+1}, v{S+2}"); a(f"v_max3_f32 v{Q+1}, v{S+3}, v{S+4}, v{S+5}")
    a(f"v_max3_f32 v{Q}, v{Q}, v{S+6}, v{S+7}"); a(f"v_max_f32 v{Q}, v{Q}, v{Q+1}")
    wave_reduce("v_max_f32", Q, full=False)
    if qk_every <= 8: ldV(nextv); nextv += 1
    a(f"v_readlane_b32 s61, v{Q}, 63")
    for T in range(8): a(f"v_subrev_f32 v{S+T}, s61, v{S+T}")
    for T in range(8): a(f"v_mul_f32 v{S+T}, 0x3fb8aa3b, v{S+T}")
    for T in range(8): a(f"v_exp_f32 v{S+T}, v{S+T}")
    a(f"v_add_f32 v{Q+1}, v{S}, v{S+1}")
    for T in range(2, 8): a(f"v_add_f32 v{Q+1}, v{Q+1}, v{S+T}")
    a(f"v_mov_b32 v{Q+2}, s{TAG}")
    wave_reduce("v_add_f32", Q + 1, full=False)
    a("s_mov_b32 exec_lo, 0"); a("s_brev_b32 exec_hi, 1")
    if o.mlprio: a(f"s_setprio {o.mlprio}")
    issue("ML", f"buffer_store_dwordx3 v[{Q}:{Q+2}], v29, {WS}, s56 offen sc1")
    a(f"ds_write_b32 v32, v33 offset:{LMF}")
    a("s_mov_b64 exec, -1")
    if o.vprio or o.mlprio: a("s_setprio 0")
    stamp(4)
    if o.kgate == 2: kgate()
    while nextv < 24: throttle(D2); ldV(nextv); nextv += 1
    stamp(5)
    ldsspin("L_ss", [f"ds_read_b32 v35, v29 offset:{LSF}", f"ds_read_b32 v34, v31 offset:{LSC}"], 35, 2)
    stamp(6)
    for T in range(8): a(f"v_mul_f32 v{S+T}, v{S+T}, v34")
    for T in range(8): a(f"v_cvt_pk_bf16_f32 v{S+T}, v{S+T}, v{S+T}")
    AT = [POOL + 4 * 23, POOL + 4 * 22]
    known = max(0, len(ops) - D2)
    for i in range(24):
        T, k = divmod(i, 3)
        at = AT[T & 1]
        if k == 0:
            for r in range(4): a(f"v_and_b32 v{at+r}, v{S+T}, v{M+r}")
        if ops.index(f"V{i}") >= known: wait_for(f"V{i}")
        c = f"v[{ACC+4*k}:{ACC+4*k+3}]"
        a(f"v_mfma_f32_16x16x32_bf16 {c}, v[{at}:{at+3}], {slot(vslot[i])}, " + ("0" if T == 0 else c))
    rowexec()
    for k in range(3): a(f"ds_write_b128 v30, v[{ACC+4*k}:{ACC+4*k+3}] offset:{LO+256*k}")
    a("s_waitcnt lgkmcnt(0)")
    if stamps:
        stamp(7)
        a("s_barrier")
        a("s_branch L_fin")
    a("L_last:")
    a("s_endpgm")
    a.raw('.section .rodata,"a"'); a.raw(".p2align 6"); a.raw(f".amdhsa_kernel {KN}")
    a.raw("  .amdhsa_next_free_vgpr 168"); a.raw(f"  .amdhsa_next_free_sgpr {96 if stamps else 70}"); a.raw("  .amdhsa_accum_offset 168")
    a.raw("  .amdhsa_group_segment_fixed_size 0"); a.raw("  .amdhsa_kernarg_size 96"); a.raw("  .amdhsa_user_sgpr_count 2")
    a.raw("  .amdhsa_user_sgpr_kernarg_segment_ptr 1"); a.raw("  .amdhsa_system_sgpr_workgroup_id_x 1"); a.raw(".end_amdhsa_kernel")
    return a.finish()

if __name__ == "__main__":
    ap = argparse.ArgumentParser()
    ap.add_argument("out")
    for f in ("nont", "nontw", "stamps", "warm"): ap.add_argument("--" + f, action="store_true")
    for n, d in dict(D=60, D2=60, nv1=4, qk=9, woat=24, kprio=2, vprio=1, mlprio=0, pre=0,
                     slq0=0, nq=1, dq=32, slq=8, slml0=0, nml=1, dml=32, slml=8, slb=4, sly0=0, ny=1, dy=8, sly=0, kgate=0,
                     slg0=64, no=1, do=8, slo=0).items():
        ap.add_argument("--" + n, type=int, default=d)
    ap.add_argument("--bar", default="C")
    x = ap.parse_args()
    open(x.out, "w").write(gen(x))
```

```python
import sys, argparse
from asmlib import Asm
KN = "parallel_sum__mha_block_cached__glu_gated_glu__decode_kernel"
HDR = open("parallel_sum__mha_block_cached__glu_gated_glu__decode.s.ref").read().split("; Override launch geometry")[0]

QPUB = 0x010000
GPUB = 0x050000
MLPUB = 0x070000
OPUB = 0x080000
YINB = 0x0C0000
STAMP = 0x400000
LQ, LH, LF1, LQF, LSF, LMF, LVF, LKF, LSC, LP1, LO = 0, 768, 512, 528, 536, 544, 576, 608, 1024, 1536, 7680
LDS = LO + 16 * 768
LOF = 640
SPIN = 1 << 15
LSPIN = 1 << 18
TAG = 64

def gen(o):
    D = o.D; D2 = o.D2; nv1 = o.nv1; stamps = o.stamps; qk_every = o.qk; wo_at = o.woat
    a = Asm()
    KVF = "" if o.nont else " nt"
    WF = "" if o.nontw else " nt"
    a.raw(HDR.rstrip())
    a.raw(f"; @launch grid=(256,1,1) block=(768,1,1) lds={LDS}")
    a.raw('.amdgcn_target "amdgcn-amd-amdhsa--gfx950"')
    a.raw(".text"); a.raw(f".globl {KN}"); a.raw(".p2align 8"); a.raw(f".type {KN},@function"); a.raw(f"{KN}:")
    def stamp(i):
        if stamps: a(f"s_memrealtime s[{70+2*i}:{71+2*i}]")
    def dump_stamps(n=12):
        if not stamps: return
        a("s_mov_b64 exec, 1")
        a("s_waitcnt lgkmcnt(0)")
        a("s_mul_i32 s52, s2, 12"); a("s_add_u32 s52, s52, s3"); a("s_lshl_b32 s52, s52, 7"); a(f"s_add_u32 s52, s52, {STAMP}")
        a("v_mov_b32 v1, 0")
        for i in range(n):
            a(f"v_mov_b32 v2, s{70+2*i}"); a(f"v_mov_b32 v3, s{71+2*i}")
            a(f"buffer_store_dwordx2 v[2:3], v1, s[48:51], s52 offen offset:{8*i}")
    def srd_ld(base, karg): a(f"s_load_dwordx2 s[{base}:{base+1}], s[0:1], {karg}")
    def srd_c(base, size): a(f"s_mov_b32 s{base+2}, {size}"); a(f"s_mov_b32 s{base+3}, 0x20000")
    def srd(base, karg, size): srd_ld(base, karg); srd_c(base, size)
    X, K, V, WQ, WO, GA, UP, DN, OUT, DBG, WS = [f"s[{8+4*i}:{11+4*i}]" for i in range(11)]
    def mktag():
        a(f"s_mul_i32 s{TAG}, s{TAG}, 1664525"); a(f"s_add_u32 s{TAG}, s{TAG}, 1013904223")
    def mktagbytes():
        for i in range(4): a(f"s_bfe_u32 s{TAG+1+i}, s{TAG}, {(8 << 16) | (8 * i)}")
    def masks(M, t0, t1):
        a(f"v_and_b32 v{t0}, 1, v2"); a(f"v_lshlrev_b32 v{t0}, 4, v{t0}")
        a(f"v_mov_b32 v{t1}, 0xffff"); a(f"v_lshlrev_b32 v{t0}, v{t0}, v{t1}")
        a(f"v_lshrrev_b32 v{t1}, 1, v2")
        for r in range(4):
            a(f"v_cmp_eq_u32 vcc, {r}, v{t1}")
            a(f"v_cndmask_b32 v{M+r}, 0, v{t0}, vcc")
    DP = ("quad_perm:[1,0,3,2]", "quad_perm:[2,3,0,1]", "row_half_mirror")
    def wave_reduce(op, v, full=True):
        if full:
            for m in DP: a(f"{op}_dpp v{v}, v{v}, v{v} {m} row_mask:0xf bank_mask:0xf")
        a(f"{op}_dpp v{v}, v{v}, v{v} row_ror:8 row_mask:0xf bank_mask:0xf")
        a(f"{op}_dpp v{v}, v{v}, v{v} row_bcast:15 row_mask:0xa bank_mask:0xf")
        a(f"{op}_dpp v{v}, v{v}, v{v} row_bcast:31 row_mask:0xc bank_mask:0xf")
    def rowaddr(dst, t, rowbytes, swave):
        a(f"v_lshrrev_b32 v{dst}, 5, v0"); a(f"v_mul_u32_u24 v{dst}, {rowbytes}, v{dst}"); a(f"v_lshl_add_u32 v{dst}, v2, 5, v{dst}")
        a(f"v_and_b32 v{t}, 16, v0"); a(f"v_add_u32 v{dst}, v{dst}, v{t}")
        a(f"s_mul_i32 s57, {swave}, {2*rowbytes}"); a(f"v_add_u32 v{dst}, s57, v{dst}")
    def rowexec(): a("s_mov_b32 exec_lo, 0x00ff00ff"); a("s_mov_b32 exec_hi, 0xff00ff00")
    def ldsspin(name, reads, flagreg, sleep):
        a(f"s_mov_b32 s57, {LSPIN}")
        a(f"{name}:")
        for r in reads: a(r)
        a(f"s_sub_u32 s57, s57, 1"); a(f"s_cbranch_scc1 {name}_done")
        a("s_waitcnt lgkmcnt(0)")
        a(f"v_cmp_eq_u32 vcc, 0, v{flagreg}")
        a(f"s_cbranch_vccz {name}_done")
        a(f"s_sleep {sleep}")
        a(f"s_branch {name}")
        a(f"{name}_done:")
        a("s_waitcnt lgkmcnt(0)")
    def poll(name, nsets, nl, issue, check, post, delay, sleep=0):
        a(f"s_mov_b32 s57, {SPIN}")
        for i in range(nsets):
            issue(i)
            if i < nsets - 1 and delay: a(f"s_sleep {delay}")
        a(f"{name}:")
        for i in range(nsets):
            check(i, lambda t: a(f"s_waitcnt vmcnt({(nsets-1)*nl + nl-1-t})"))
            a(f"s_cbranch_vccz {name}_d{i}")
            if sleep: a(f"s_sleep {sleep}")
            issue(i)
        a("s_sub_u32 s57, s57, 1"); a(f"s_cbranch_scc0 {name}")
        a("s_waitcnt vmcnt(0)")
        for i in range(nsets):
            a(f"{name}_d{i}:")
            a("s_nop 1")
            post(i)
            if i < nsets - 1: a(f"s_branch {name}_done")
        a(f"{name}_done:")
        a("s_nop 1")
    WB = 64; AB = 20
    G = o.G
    def until(name, t, sl=1, base="s69"):
        a(f"{name}:")
        a("s_memrealtime s[46:47]")
        a("s_waitcnt lgkmcnt(0)")
        a(f"s_sub_u32 s46, s46, {base}")
        a(f"s_cmp_ge_i32 s46, {t}")
        a(f"s_cbranch_scc1 {name}_d")
        a(f"s_sleep {sl}")
        a(f"s_branch {name}")
        a(f"{name}_d:")

    a("L_start:")
    a("s_cmp_ge_u32 s2, 256"); a("s_cbranch_scc1 L_end")
    srd_ld(48, 88)
    if stamps:
        for i in range(12): a(f"s_mov_b64 s[{70+2*i}:{71+2*i}], 0")
    stamp(0)
    a("v_lshrrev_b32 v1, 6, v0")
    a("s_bfe_u32 s5, s2, 0x30003")
    a("v_readfirstlane_b32 s3, v1")
    a("s_and_b32 s60, s2, 7"); a("s_lshr_b32 s61, s2, 6")
    a("s_lshl_b32 s4, s60, 2"); a("s_add_u32 s4, s4, s61")
    srd_c(48, 0x10000000)
    a("s_sub_u32 s7, s3, 4"); a("s_cbranch_scc0 L_stream")
    a("s_setprio 3")
    a("s_memrealtime s[46:47]")
    srd(8, 0, 1280)
    a("v_and_b32 v0, 63, v0"); a("v_lshrrev_b32 v1, 3, v0"); a("v_and_b32 v2, 7, v0")
    a("s_mov_b32 s7, s3")
    a("v_mul_u32_u24 v4, 20, v0")
    a("v_mul_u32_u24 v5, 20, v1")
    a("s_cmp_ge_u32 s5, 6"); a("s_cbranch_scc1 L_hB")
    srd(20, 24, 7864320)
    a("s_and_b32 s52, s5, 1"); a("s_mul_i32 s52, s52, 320"); a("s_mul_i32 s53, s7, 80"); a("s_add_u32 s55, s52, s53")
    a("v_mul_u32_u24 v3, 122880, v1"); a("v_lshl_add_u32 v3, v2, 4, v3")
    a("s_mul_i32 s52, s55, 12288"); a("s_mul_i32 s53, s4, 384"); a("s_add_u32 s52, s52, s53")
    a("s_lshr_b32 s53, s5, 1"); a("s_lshl_b32 s53, s53, 7"); a("s_add_u32 s52, s52, s53")
    a("s_lshl_b32 s55, s55, 1")
    def xloads():
        a(f"buffer_load_dwordx4 v[8:11], v4, {X}, 0 offen")
        a(f"buffer_load_dword v12, v4, {X}, 0 offen offset:16")
        a(f"buffer_load_dwordx4 v[14:17], v5, {X}, s55 offen")
        a(f"buffer_load_dword v18, v5, {X}, s55 offen offset:16")
    a("s_waitcnt lgkmcnt(0)")
    xloads()
    for r in range(10):
        a(f"buffer_load_dwordx4 v[{WB+4*r}:{WB+4*r+3}], v3, {WQ}, s52 offen{WF}")
        if r < 9: a("s_add_u32 s52, s52, 12288")
    a("s_branch L_hinit")
    a("L_hB:")
    a("s_bitcmp1_b32 s5, 0"); a("s_cbranch_scc1 L_hBu")
    srd_ld(20, 48); a("s_branch L_hB2")
    a("L_hBu:")
    srd_ld(20, 56)
    a("L_hB2:")
    srd_c(20, 1966080)
    a("s_mul_i32 s52, s61, 160"); a("s_lshr_b32 s53, s7, 1"); a("s_mul_i32 s53, s53, 80"); a("s_add_u32 s55, s52, s53")
    a("s_and_b32 s53, s7, 1"); a("s_mul_i32 s53, s53, 5"); a("s_add_u32 s52, s55, s53")
    a("v_mul_u32_u24 v3, 30720, v1"); a("v_lshl_add_u32 v3, v2, 4, v3")
    a("s_mul_i32 s52, s52, 3072"); a("s_mul_i32 s53, s60, 384"); a("s_add_u32 s52, s52, s53")
    a("s_lshl_b32 s55, s55, 1")
    a("s_waitcnt lgkmcnt(0)")
    xloads()
    for r in range(5):
        for k in range(3):
            i = 3 * r + k
            a(f"buffer_load_dwordx4 v[{WB+4*i}:{WB+4*i+3}], v3, {WQ}, s52 offen offset:{128*k}{WF}")
        if r < 4: a("s_add_u32 s52, s52, 3072")
    a("L_hinit:")
    a("s_mov_b32 s69, s46")
    if o.bar == 'C': a("s_barrier")
    a(f"s_load_dword s{TAG}, s[48:49], 0")
    stamp(1)
    srd(24, 32, 7864320); srd(36, 64, 1966080); srd(40, 72, 1280)
    a("s_lshl_b32 s6, s4, 3"); a("s_add_u32 s6, s6, s5")
    masks(24, 6, 7)
    rowaddr(20, 21, 256, "s7")
    a("v_lshlrev_b32 v21, 2, v0")
    a("v_lshlrev_b32 v22, 3, v0")
    a("s_lshl_b32 s58, s7, 2"); a("v_mov_b32 v19, s58")
    a("v_and_b32 v23, 12, v21")
    a("v_mov_b32 v7, 1")
    a("s_waitcnt vmcnt(15)")
    a("s_cmp_ge_u32 s5, 6"); a("s_cbranch_scc1 L_hx")
    a("s_waitcnt vmcnt(10)")
    a("L_hx:")
    for i in range(5):
        a(f"v_lshlrev_b32 v{28+2*i}, 16, v{8+i}"); a(f"v_and_b32 v{29+2*i}, 0xffff0000, v{8+i}")
    a("v_add_f32 v38, v28, v29")
    for i in range(2, 10): a(f"v_add_f32 v38, v38, v{28+i}")
    wave_reduce("v_add_f32", 38)
    a("v_readlane_b32 s56, v38, 63")
    a("v_mov_b32 v39, 0x3acccccd")
    a("v_mul_f32 v39, s56, v39")
    for i in range(10): a(f"v_sub_f32 v{28+i}, v{28+i}, v39")
    a("v_mul_f32 v38, v28, v28")
    for i in range(1, 10): a(f"v_fmac_f32 v38, v{28+i}, v{28+i}")
    wave_reduce("v_add_f32", 38)
    a("v_readlane_b32 s56, v38, 63")
    a("v_mov_b32 v38, 0x3acccccd")
    a("v_mul_f32 v38, s56, v38")
    a("v_cvt_pk_bf16_f32 v38, v38, v39")
    a("v_and_b32 v39, 0xffff0000, v38")
    a("v_lshlrev_b32 v38, 16, v38")
    a("v_add_f32 v38, 0x3727c5ac, v38")
    a("v_cvt_pk_bf16_f32 v38, v38, v38")
    a("v_lshlrev_b32 v38, 16, v38")
    a("v_sqrt_f32 v38, v38")
    a("v_cvt_pk_bf16_f32 v38, v38, v38")
    a("v_lshlrev_b32 v38, 16, v38")
    a("v_rcp_f32 v38, v38")
    for i in range(5):
        a(f"v_lshlrev_b32 v{28+2*i}, 16, v{14+i}"); a(f"v_and_b32 v{29+2*i}, 0xffff0000, v{14+i}")
    for i in range(10): a(f"v_sub_f32 v{28+i}, v{28+i}, v39")
    for i in range(5):
        a(f"v_cvt_pk_bf16_f32 v{8+i}, v{28+2*i}, v{29+2*i}")
    for i in range(5):
        a(f"v_lshlrev_b32 v{28+2*i}, 16, v{8+i}"); a(f"v_and_b32 v{29+2*i}, 0xffff0000, v{8+i}")
    for i in range(10): a(f"v_mul_f32 v{28+i}, v{28+i}, v38")
    for i in range(10): a(f"v_cvt_pk_bf16_f32 v{28+i}, v{28+i}, v{28+i}")
    if o.bar == 'D': a("s_barrier")
    a("s_waitcnt lgkmcnt(0)")
    mktag(); mktagbytes()
    stamp(2)
    a("s_cmp_ge_u32 s5, 6"); a("s_cbranch_scc1 L_hmB")
    a(f"s_lshl_b32 s53, s6, 10"); a(f"s_add_u32 s53, s53, {QPUB}")
    for r in range(10):
        T = 52 + 4 * (r & 1)
        for i in range(4): a(f"v_and_b32 v{T+i}, v{28+r}, v{24+i}")
        a(f"s_waitcnt vmcnt({9-r})")
        a(f"v_mfma_f32_16x16x32_bf16 v[40:43], v[{T}:{T+3}], v[{WB+4*r}:{WB+4*r+3}], " + ("0" if r == 0 else "v[40:43]"))
    stamp(3)
    rowexec()
    a(f"ds_write_b128 v20, v[40:43] offset:{LP1}")
    a("s_branch L_hred")
    a("L_hmB:")
    a("s_lshl_b32 s53, s60, 3"); a("s_and_b32 s54, s5, 1"); a("s_lshl_b32 s54, s54, 2"); a("s_add_u32 s53, s53, s54"); a("s_add_u32 s53, s53, s61")
    a(f"s_lshl_b32 s53, s53, 11"); a(f"s_add_u32 s53, s53, {GPUB}")
    a("s_bitcmp0_b32 s7, 0"); a("s_cbranch_scc1 L_hmB2")
    for i in range(5): a(f"v_mov_b32 v{28+i}, v{33+i}")
    a("L_hmB2:")
    for r in range(5):
        T = 52 + 4 * (r & 1)
        for i in range(4): a(f"v_and_b32 v{T+i}, v{28+r}, v{24+i}")
        a(f"s_waitcnt vmcnt({12-3*r})")
        for k in range(3):
            i = 3 * r + k; c = f"v[{40+4*k}:{43+4*k}]"
            a(f"v_mfma_f32_16x16x32_bf16 {c}, v[{T}:{T+3}], v[{WB+4*i}:{WB+4*i+3}], " + ("0" if r == 0 else c))
    stamp(3)
    rowexec()
    for k in range(3): a(f"ds_write_b128 v20, v[{40+4*k}:{43+4*k}] offset:{LP1+2048*k}")
    a("L_hred:")
    a("s_mov_b64 exec, -1")
    a(f"ds_write_b32 v19, v7 offset:{LF1}")
    a(f"ds_read_b32 v8, v23 offset:{LF1}")
    for i in range(4):
        a(f"ds_read2st64_b32 v[{40+2*i}:{41+2*i}], v21 offset0:{LP1//256+2*i} offset1:{LP1//256+2*i+1}")
    a("s_waitcnt lgkmcnt(0)")
    a(f"v_cmp_eq_u32 vcc, 0, v8")
    a("s_cbranch_vccnz L_hnopub")
    def pub(r, off):
        a(f"v_pk_add_f32 v[{r}:{r+1}], v[{r}:{r+1}], v[{r+2}:{r+3}]"); a(f"v_pk_add_f32 v[{r+4}:{r+5}], v[{r+4}:{r+5}], v[{r+6}:{r+7}]")
        a(f"v_pk_add_f32 v[{r}:{r+1}], v[{r}:{r+1}], v[{r+4}:{r+5}]"); a(f"v_add_f32 v{r}, v{r}, v{r+1}"); a(f"v_mov_b32 v{r+1}, s{TAG}")
        a(f"buffer_store_dwordx2 v[{r}:{r+1}], v22, {WS}, s53 offen offset:{off} sc1")
    pub(40, 0)
    a("s_cmp_lt_u32 s5, 6"); a("s_cbranch_scc1 L_hnopub")
    for i in range(4, 12):
        a(f"ds_read2st64_b32 v[{40+2*i}:{41+2*i}], v21 offset0:{LP1//256+2*i} offset1:{LP1//256+2*i+1}")
    a("s_waitcnt lgkmcnt(0)")
    pub(48, 512); pub(56, 1024)
    a("L_hnopub:")
    stamp(4)
    a("v_and_b32 v19, 28, v21")
    a("s_cmp_lg_u32 s7, 0"); a("s_cbranch_scc1 L_hy")

    a("v_lshrrev_b32 v6, 5, v0"); a("v_and_b32 v8, 31, v0"); a("v_lshlrev_b32 v6, 10, v6"); a("v_lshl_add_u32 v6, v8, 4, v6")
    a(f"s_lshl_b32 s53, s4, 13"); a(f"s_add_u32 s53, s53, {QPUB}"); a("s_add_u32 s54, s53, 4096")
    a("v_mov_b32 v8, 0")
    if o.slq0: a(f"s_sleep {o.slq0}")
    def q_issue(i):
        b = 64 + 12 * i
        a(f"buffer_load_dwordx4 v[{b}:{b+3}], v6, {WS}, s53 offen sc1")
        a(f"buffer_load_dwordx4 v[{b+4}:{b+7}], v6, {WS}, s53 offen offset:2048 sc1")
        a(f"buffer_load_dwordx4 v[{b+8}:{b+11}], v6, {WS}, s54 offen sc1")
    def q_check(i, wait):
        b = 64 + 12 * i
        wait(2)
        for t in range(6): a(f"v_xor_b32 v{b+1+2*t}, s{TAG}, v{b+1+2*t}")
        a(f"v_or3_b32 v{b+1}, v{b+1}, v{b+3}, v{b+5}"); a(f"v_or3_b32 v{b+7}, v{b+7}, v{b+9}, v{b+11}"); a(f"v_or_b32 v{b+1}, v{b+1}, v{b+7}")
        a(f"v_cmp_ne_u32 vcc, 0, v{b+1}")
    def q_post(i):
        b = 64 + 12 * i
        for t in range(6): a(f"v_permlane32_swap_b32 v{b+2*t}, v{b+1+2*t}")
        for t in range(6): a(f"v_add_f32 v{40+t}, v{b+2*t}, v{b+1+2*t}")
    poll("L_pq", o.nq, 3, q_issue, q_check, q_post, o.dq, o.slq)
    stamp(5)
    for k in range(3): a(f"v_cvt_pk_bf16_f32 v{40+2*k}, v{40+2*k}, v{41+2*k}")
    a("s_mov_b32 exec_hi, 0")
    for k in range(3): a(f"ds_write_b32 v21, v{40+2*k} offset:{LQ+128*k}")
    a("v_mov_b32 v12, 1"); a(f"v_mov_b32 v13, s{TAG}")
    a(f"ds_write_b64 v8, v[12:13] offset:{LQF}")
    a("s_mov_b32 exec_hi, -1")
    a("v_lshlrev_b32 v6, 4, v0")
    a(f"s_mul_i32 s58, s2, {G}")
    a("v_and_b32 v9, 3, v0"); a("v_add_u32 v9, s58, v9")
    a("v_bfe_u32 v10, v0, 2, 1"); a("v_bfe_u32 v12, v0, 3, 1"); a("v_lshl_add_u32 v10, v10, 1, v12")
    a("v_bfe_u32 v12, v9, 4, 1"); a("v_lshl_add_u32 v10, v12, 2, v10")
    a("v_and_b32 v12, 15, v9"); a("v_lshl_add_u32 v10, v12, 3, v10")
    a("v_lshrrev_b32 v12, 5, v9"); a("v_lshl_add_u32 v10, v12, 7, v10")
    a("v_lshlrev_b32 v10, 1, v10")
    a(f"buffer_load_ushort v9, v10, {X}, 0 offen")
    if o.tlb & 4: a(f"buffer_load_ushort v15, v10, {OUT}, 0 offen")
    a(f"s_lshl_b32 s53, s4, 10"); a(f"s_add_u32 s53, s53, {MLPUB}")
    a("v_lshrrev_b32 v11, 4, v0"); a("v_and_b32 v12, 15, v0"); a("v_lshlrev_b32 v11, 11, v11"); a("v_lshl_add_u32 v11, v12, 4, v11")
    a("s_lshl_b32 s54, s4, 13"); a("s_lshl_b32 s55, s5, 8"); a("s_add_u32 s54, s54, s55"); a(f"s_add_u32 s54, s54, {OPUB}")
    a("v_mov_b32 v23, 0xffffff00")
    ldsspin("L_wml", [f"ds_read_b32 v12, v19 offset:{LMF}"], 12, 4)
    stamp(6)
    if o.slml0: a(f"s_sleep {o.slml0}")
    def ml_issue(i): a(f"buffer_load_dwordx3 v[{112+4*i}:{114+4*i}], v6, {WS}, s53 offen sc1")
    def ml_check(i, wait): wait(0); a(f"v_cmp_ne_u32 vcc, s{TAG}, v{114+4*i}")
    def ml_post(i):
        a(f"v_mov_b32 v12, v{112+4*i}"); a(f"v_mov_b32 v14, v{112+4*i}"); a(f"v_mov_b32 v13, v{113+4*i}")
    poll("L_pml", o.nml, 1, ml_issue, ml_check, ml_post, o.dml, o.slml)
    stamp(7)
    wave_reduce("v_max_f32", 14)
    a("v_readlane_b32 s56, v14, 63")
    a("v_subrev_f32 v12, s56, v12")
    a("v_mul_f32 v12, 0x3fb8aa3b, v12")
    a("v_exp_f32 v12, v12")
    a("v_mul_f32 v13, v13, v12")
    wave_reduce("v_add_f32", 13)
    a("v_rcp_f32 v13, v13")
    a("v_readlane_b32 s56, v13, 63")
    a("v_mul_f32 v12, s56, v12")
    a(f"ds_write_b32 v21, v12 offset:{LSC}")
    a(f"ds_write_b32 v8, v7 offset:{LSF}")
    a(f"s_mul_i32 s53, s2, {2048*G}"); a(f"s_add_u32 s53, s53, {YINB}"); a("s_add_u32 s55, s53, 4096")
    a("v_lshlrev_b32 v9, 16, v9")
    a(f"v_mov_b32 v63, s{TAG}")
    a("s_mov_b32 exec_hi, 0xffff")
    stamp(8)
    a("s_barrier")
    stamp(9)
    for i in range(16): a(f"ds_read_b128 v[{64+4*i}:{67+4*i}], v6 offset:{LO+768*i}")
    for i in range(2, 16):
        a(f"s_waitcnt lgkmcnt({15-i})")
        d = 64 + 4 * (i & 1)
        for e in (0, 2): a(f"v_pk_add_f32 v[{d+e}:{d+e+1}], v[{d+e}:{d+e+1}], v[{64+4*i+e}:{65+4*i+e}]")
    for e in (0, 2): a(f"v_pk_add_f32 v[{64+e}:{65+e}], v[{64+e}:{65+e}], v[{68+e}:{69+e}]")
    for e in range(4): a(f"v_and_or_b32 v{64+e}, v{64+e}, v23, s{TAG+1+e}")
    a(f"buffer_store_dwordx4 v[64:67], v11, {WS}, s54 offen sc1")
    a("s_mov_b32 exec_hi, -1")
    stamp(10)
    a(f"s_cmp_ge_u32 s2, {160//G}"); a("s_cbranch_scc1 L_fin")
    def tb_issue(base, n, so, va="v6"):
        def f(i):
            for t in range(n): a(f"buffer_load_dwordx4 v[{base+4*n*i+4*t}:{base+4*n*i+4*t+3}], {va}, {WS}, {so[t//4]} offen offset:{1024*(t%4)} sc1")
        return f
    def tb_check(base, n, acc=40, fl=14):
        def f(i, wait):
            b0 = base + 4 * n * i
            for t in range(n):
                wait(t)
                b = b0 + 4 * t
                for e in range(4): a(f"v_xor_b32 v{b+e}, s{TAG+1+e}, v{b+e}")
                if t == 0:
                    a(f"v_or3_b32 v{fl}, v{b}, v{b+1}, v{b+2}"); a(f"v_or_b32 v{fl}, v{fl}, v{b+3}")
                else:
                    a(f"v_or3_b32 v{fl}, v{fl}, v{b}, v{b+1}"); a(f"v_or3_b32 v{fl}, v{fl}, v{b+2}, v{b+3}")
                    s0 = b0 if t == 1 else acc
                    a(f"v_pk_add_f32 v[{acc}:{acc+1}], v[{s0}:{s0+1}], v[{b}:{b+1}]"); a(f"v_pk_add_f32 v[{acc+2}:{acc+3}], v[{s0+2}:{s0+3}], v[{b+2}:{b+3}]")
            a(f"v_and_b32 v{fl}, 0xff, v{fl}")
            a(f"v_cmp_ne_u32 vcc, 0, v{fl}")
        return f
    if o.sly0: a(f"s_sleep {o.sly0}")
    poll("L_py", o.ny, 2 * G, tb_issue(72, 2 * G, ["s53", "s55"]), tb_check(72, 2 * G), lambda i: None, o.dy, o.sly)
    r, t = 40, 44
    a(f"v_add_f32_dpp v{t}, v{r}, v{r} row_ror:8 row_mask:0xf bank_mask:0x3")
    a(f"v_add_f32_dpp v{t+1}, v{r+2}, v{r+2} row_ror:8 row_mask:0xf bank_mask:0x3")
    a(f"v_add_f32_dpp v{t}, v{r+1}, v{r+1} row_ror:8 row_mask:0xf bank_mask:0xc")
    a(f"v_add_f32_dpp v{t+1}, v{r+3}, v{r+3} row_ror:8 row_mask:0xf bank_mask:0xc")
    a(f"v_add_f32_dpp v{t+2}, v{t}, v{t} row_shl:4 row_mask:0xf bank_mask:0x5")
    a(f"v_add_f32_dpp v{t+2}, v{t+1}, v{t+1} row_shr:4 row_mask:0xf bank_mask:0xa")
    if G == 1: a(f"v_add_f32_dpp v{t+2}, v{t+2}, v{t+2} quad_perm:[1,0,3,2] row_mask:0xf bank_mask:0xf")
    if G <= 2: a(f"v_add_f32_dpp v{t+2}, v{t+2}, v{t+2} quad_perm:[2,3,0,1] row_mask:0xf bank_mask:0xf")
    a("v_mov_b32 v44, v46")
    a("v_permlane32_swap_b32 v44, v45")
    a("v_mov_b32 v44, v46")
    a("v_permlane16_swap_b32 v44, v47")
    a("v_add_f32 v46, v46, v45")
    a("v_permlane16_swap_b32 v45, v15")
    a("v_add_f32 v46, v46, v47")
    a("v_cvt_pk_bf16_f32 v46, v46, v15")
    a("v_and_b32 v15, 0xffff0000, v46")
    a("v_lshlrev_b32 v46, 16, v46")
    a("v_add_f32 v46, v46, v9")
    a("v_cvt_pk_bf16_f32 v46, v46, v46"); a("v_lshlrev_b32 v46, 16, v46")
    a("v_add_f32 v46, v46, v15")
    a("v_cvt_pk_bf16_f32 v46, v46, v46")
    a(f"s_mov_b64 exec, {0x1111 * ((1 << G) - 1)}")
    a(f"buffer_store_short v46, v10, {OUT}, 0 offen")
    stamp(11)
    a("s_cmp_lg_u32 s2, 0"); a("s_cbranch_scc1 L_fin")
    a("s_mov_b64 exec, 1")
    a(f"buffer_store_dword v63, v8, {WS}, 0 offen sc1")
    a("s_branch L_fin")

    a("L_hy:")
    a("v_and_b32 v10, 8, v0"); a("v_cmp_eq_u32 vcc, 0, v10")
    for r in range(4): a(f"v_cndmask_b32 v{24+r}, 0, v{24+r}, vcc")
    a("v_lshrrev_b32 v4, 4, v0"); a("v_and_b32 v5, 15, v0")
    a("v_mov_b32 v23, 0xffffff00")
    lg = {1: 0, 2: 1, 4: 2}[G]
    a(f"v_lshrrev_b32 v11, {lg}, v0"); a(f"v_lshlrev_b32 v11, {11+lg}, v11")
    if G > 1: a(f"v_and_b32 v10, {G-1}, v0"); a("v_lshl_add_u32 v11, v10, 4, v11")
    a(f"s_lshl_b32 s56, s4, {lg}"); a("s_lshr_b32 s58, s56, 4"); a("s_lshl_b32 s58, s58, 10"); a("s_and_b32 s56, s56, 15"); a("s_lshl_b32 s56, s56, 4")
    a("s_add_u32 s56, s56, s58"); a(f"s_add_u32 s56, s56, {YINB}")
    WOB = 64
    def ypub(c):
        a("s_mov_b32 exec_hi, 0")
        for i in range(4): a(f"v_and_or_b32 v{c+i}, v{c+i}, v23, s{TAG+1+i}")
        a(f"buffer_store_dwordx4 v[{c}:{c+3}], v11, {WS}, s56 offen sc1")
    a("s_cmp_lg_u32 s7, 3"); a("s_cbranch_scc1 L_hy_y")
    a("s_cmp_ge_u32 s5, 5"); a("s_cbranch_scc1 L_fin")
    a("s_lshl_b32 s58, s5, 16"); a("s_add_u32 s56, s56, s58"); a("s_add_u32 s56, s56, 768")
    a("v_mul_u32_u24 v6, 15360, v4"); a("v_lshl_add_u32 v6, v5, 4, v6")
    a("s_mul_i32 s62, s4, 61440"); a("s_lshl_b32 s58, s5, 8"); a("s_add_u32 s62, s62, s58")
    a("v_lshlrev_b32 v8, 11, v1"); a("v_lshl_add_u32 v8, v2, 4, v8")
    a("s_lshl_b32 s53, s60, 14"); a("s_mul_i32 s54, s61, 384"); a("s_add_u32 s53, s53, s54")
    a(f"s_add_u32 s53, s53, {GPUB}")
    a("v_mul_u32_u24 v7, 48, v4")
    a("v_lshlrev_b32 v10, 3, v0")
    def rebase():
        if o.wop: a("s_memrealtime s[46:47]"); a("s_waitcnt lgkmcnt(0)"); a("s_mov_b32 s69, s46")
    def dnld():
        rebase()
        for st in range(12):
            r = WOB + 4 * st
            if o.wop and st and st % o.wog == 0: until(f"L_dnp{st}", st * o.wop * 4 // 30)
            a(f"buffer_load_dwordx4 v[{r}:{r+3}], v6, {DN}, s62 offen offset:{1280*(st%3)}{WF}")
            if st % 3 == 2 and st < 11: a("s_add_u32 s62, s62, 3840")
    if o.bprio != 3: a(f"s_setprio {o.bprio}")
    if o.dnfirst: dnld()
    if o.gt: until("L_gt", o.gt, 4)
    elif o.slg0: a(f"s_sleep {o.slg0}")
    def g_issue(i):
        for j in range(3): a(f"buffer_load_dwordx4 v[{40+4*j}:{43+4*j}], v8, {WS}, s53 offen offset:{128*j} sc1")
    def g_check(i, wait):
        wait(2)
        for t in range(6): a(f"v_xor_b32 v{41+2*t}, s{TAG}, v{41+2*t}")
        a("v_or3_b32 v41, v41, v43, v45"); a("v_or3_b32 v47, v47, v49, v51"); a("v_or_b32 v41, v41, v47")
        a("v_cmp_ne_u32 vcc, 0, v41")
    poll("L_pg", 1, 3, g_issue, g_check, lambda i: None, 0, 16)
    if not o.dnfirst and not o.dnlate: dnld()
    for t in range(6): a(f"v_add_f32_dpp v{40+2*t}, v{40+2*t}, v{40+2*t} row_ror:8 row_mask:0xf bank_mask:0xf")
    for t in range(6): a(f"v_mov_b32 v{41+2*t}, v{40+2*t}")
    for t in range(6): a(f"v_permlane16_swap_b32 v{41+2*t}, v{28+t}")
    for t in range(6): a(f"v_add_f32 v{40+2*t}, v{40+2*t}, v{28+t}")
    for t in range(6): a(f"v_mov_b32 v{28+t}, v{40+2*t}")
    for t in range(6): a(f"v_permlane32_swap_b32 v{28+t}, v{41+2*t}")
    for t in range(6): a(f"v_cvt_pk_bf16_f32 v{40+2*t}, v{40+2*t}, v{41+2*t}")
    for t in range(6): a(f"v_and_b32 v{41+2*t}, 0xffff0000, v{40+2*t}")
    for t in range(6): a(f"v_lshlrev_b32 v{40+2*t}, 16, v{40+2*t}")
    for t in range(6): a(f"v_mul_f32 v{40+2*t}, 0xbfb8aa3b, v{40+2*t}")
    for t in range(6): a(f"v_exp_f32 v{40+2*t}, v{40+2*t}")
    for t in range(6): a(f"v_add_f32 v{40+2*t}, 1.0, v{40+2*t}")
    for t in range(6): a(f"v_rcp_f32 v{40+2*t}, v{40+2*t}")
    for t in range(6): a(f"v_cvt_pk_bf16_f32 v{40+2*t}, v{40+2*t}, v{40+2*t}")
    for t in range(6): a(f"v_lshlrev_b32 v{40+2*t}, 16, v{40+2*t}")
    for t in range(6): a(f"v_mul_f32 v{40+2*t}, v{40+2*t}, v{41+2*t}")
    for t in range(6): a(f"v_cvt_pk_bf16_f32 v{28+t}, v{40+2*t}, v{40+2*t}")
    a("s_mov_b64 exec, 0xff")
    for j in range(3): a(f"ds_write_b64 v10, v[{28+2*j}:{29+2*j}] offset:{LH+64*j}")
    a("s_mov_b64 exec, -1")
    for j in range(3): a(f"ds_read_b128 v[{40+4*j}:{43+4*j}], v7 offset:{LH+16*j}")
    a("s_waitcnt lgkmcnt(0)")
    stamp(5)
    if o.dnlate:
        if o.dnt: until("L_dnt", o.dnt, 4)
        else: ldsspin("L_wv3", [f"ds_read_b32 v12, v19 offset:{LVF}"], 12, 4)
        dnld()
        a("s_barrier")
    for st in range(12):
        T = 28 + 4 * (st & 1)
        for r in range(4): a(f"v_and_b32 v{T+r}, v{40+st}, v{24+r}")
        a(f"s_waitcnt vmcnt({11-st})")
        a(f"v_mfma_f32_16x16x32_bf16 v[16:19], v[{T}:{T+3}], v[{WOB+4*st}:{WOB+4*st+3}], " + ("0" if st == 0 else "v[16:19]"))
    ypub(16)
    stamp(8)
    a("s_branch L_fin")
    a("L_hy_y:")
    a("s_lshl_b32 s59, s5, 1"); a("s_add_u32 s59, s59, s7"); a("s_sub_u32 s59, s59, 1")
    a("s_cmp_eq_u32 s59, 15"); a("s_cbranch_scc1 L_fin")
    a("s_mul_i32 s62, s59, 13"); a("s_lshr_b32 s62, s62, 6")
    a("s_mul_i32 s63, s62, 5"); a("s_sub_u32 s63, s59, s63")
    a("s_lshl_b32 s58, s63, 16"); a("s_add_u32 s56, s56, s58"); a("s_lshl_b32 s58, s62, 8"); a("s_add_u32 s56, s56, s58")
    a("v_mul_u32_u24 v6, 1280, v4"); a("v_lshl_add_u32 v6, v5, 4, v6")
    a("s_mul_i32 s52, s4, 245760"); a("s_mul_i32 s53, s62, 81920"); a("s_add_u32 s52, s52, s53"); a("s_lshl_b32 s53, s63, 8"); a("s_add_u32 s52, s52, s53")
    a("v_lshlrev_b32 v10, 4, v0")
    a("s_lshl_b32 s55, s4, 13"); a("s_lshl_b32 s53, s62, 11"); a("s_add_u32 s55, s55, s53"); a(f"s_add_u32 s55, s55, {OPUB}")
    a("s_lshl_b32 s53, s7, 2"); a("v_mov_b32 v8, s53"); a("s_lshl_b32 s53, s7, 8"); a("v_add_u32 v9, s53, v21")
    if o.wot: until("L_wot", o.wot, 4)
    else: ldsspin("L_wv", [f"ds_read_b32 v12, v19 offset:{LVF}"], 12, 4)
    stamp(5)
    rebase()
    for st in range(16):
        r = WOB + 4 * st
        if o.wop and st and st % o.wog == 0: until(f"L_wop{st}", st * o.wop // 10)
        a(f"buffer_load_dwordx4 v[{r}:{r+3}], v6, {WO}, s52 offen{WF}")
        if st < 15: a("s_add_u32 s52, s52, 5120")
    a("s_barrier")
    stamp(6)
    if stamps and o.wolst: a("s_waitcnt vmcnt(0)"); stamp(9)
    def opoll(va):
        if o.slo0: a(f"s_sleep {o.slo0}")
        poll("L_po", o.no, 2, tb_issue(128, 2, ["s55"], va), tb_check(128, 2, 12, 16), lambda i: None, o.do, o.slo)
    def oreduce():
        a("v_permlane32_swap_b32 v12, v14"); a("v_permlane32_swap_b32 v13, v15")
        a("v_add_f32 v12, v12, v14"); a("v_add_f32 v13, v13, v15")
        a("v_permlane16_swap_b32 v12, v13")
        a("v_add_f32 v12, v12, v13")
        a("v_cvt_pk_bf16_f32 v12, v12, v12")
    if o.spoll:
        ldsspin("L_wo", [f"ds_read_b32 v13, v8 offset:{LOF-4}", f"ds_read_b32 v12, v9 offset:{LP1-256}"], 13, 1)
        stamp(7)
    else:
        opoll("v10")
        stamp(7)
        oreduce()
    for st in range(16):
        T = 28 + 4 * (st % 3)
        for r in range(4): a(f"v_and_b32_dpp v{T+r}, v12, v{24+r} row_newbcast:{st} row_mask:0xf bank_mask:0xf")
        c = f"v[{16+4*(st&1)}:{19+4*(st&1)}]" if False else "v[16:19]"
        if st >= 1:
            Tp = 28 + 4 * ((st - 1) % 3); rp = WOB + 4 * (st - 1)
            if o.spoll: a(f"s_waitcnt vmcnt({16-st})")
            a(f"v_mfma_f32_16x16x32_bf16 v[16:19], v[{Tp}:{Tp+3}], v[{rp}:{rp+3}], " + ("0" if st == 1 else "v[16:19]"))
    if o.spoll: a("s_waitcnt vmcnt(0)")
    a(f"v_mfma_f32_16x16x32_bf16 v[16:19], v[28:31], v[{WOB+60}:{WOB+63}], v[16:19]")
    ypub(16)
    stamp(8)
    a("L_fin:")
    dump_stamps()
    a("L_end:"); a("s_endpgm")

    a("L_stream:")
    if o.pace and o.pstart:
        a("s_memrealtime s[62:63]")
        a(f"s_mul_i32 s59, s7, {o.pstag}")
    srd(12, 8, 50331648); srd(16, 16, 50331648)
    if o.warm:
        a("s_getpc_b64 s[44:45]")
        a("L_pc:")
        a("s_sub_u32 s44, s44, L_pc-L_start"); a("s_subb_u32 s45, s45, 0")
        a("v_lshlrev_b32 v1, 7, v0"); a("v_subrev_u32 v1, 32768, v1")
        a("v_cmp_gt_u32 vcc, L_last-L_start, v1")
        a("s_and_saveexec_b64 s[46:47], vcc")
        a("s_cbranch_execz L_nowarm")
        a("global_load_dword v167, v1, s[44:45]")
        a("L_nowarm:")
        a("s_mov_b64 exec, -1")
    a("v_and_b32 v0, 63, v0"); a("v_lshrrev_b32 v1, 3, v0"); a("v_and_b32 v2, 7, v0")
    a("v_mov_b32 v29, 0"); a("v_lshlrev_b32 v28, 2, v0")
    a(f"ds_write_b32 v28, v29 offset:{LF1}")
    a("s_lshl_b32 s6, s4, 3"); a("s_add_u32 s6, s6, s5")
    a("v_mul_u32_u24 v3, 384, v1"); a("v_lshl_add_u32 v3, v2, 4, v3")
    a("s_mul_i32 s52, s6, 196608"); a("s_mul_i32 s53, s7, 24576"); a("s_add_u32 s52, s52, s53")
    a("s_add_u32 s53, s52, 6144"); a("s_add_u32 s54, s52, 12288"); a("s_add_u32 s55, s52, 18432")
    M = 4; S = 8; Q = 16; ACC = 16; POOL = 36
    NSLOT = (168 - POOL) // 4
    def slot(i): return f"v[{POOL+4*i}:{POOL+4*i+3}]"
    def kvoff(i):
        T, k = divmod(i, 3)
        return f"s{52 + T//2}", (T & 1) * 3072 + 128 * k
    ops = []
    def issue(name, text): ops.append(name); a(text)
    def wait_for(name):
        n = len(ops) - 1 - ops.index(name)
        a(f"s_waitcnt vmcnt({n})")
    def throttle(d):
        if len(ops) >= d: a(f"s_waitcnt vmcnt({d-1})")
    NX = NSLOT - 24
    vslot = {i: (24 + i if i < NX else i - NX) for i in range(24)}
    assert nv1 <= NX
    npace = [0]
    def pace():
        i = npace[0]; npace[0] += 1
        if not o.pace or i < o.pn0 or (i - o.pn0) % o.pg: return
        a(f"L_pc{i}:")
        a("s_memrealtime s[58:59]")
        a("s_waitcnt lgkmcnt(0)")
        a("s_sub_u32 s58, s58, s62")
        a(f"s_cmp_ge_i32 s58, {(i - o.pn0) * o.pace // 10 + o.poff}")
        a(f"s_cbranch_scc1 L_pd{i}")
        a("s_sleep 1")
        a(f"s_branch L_pc{i}")
        a(f"L_pd{i}:")
    def ldK(i):
        pace()
        so, off = kvoff(i); issue(f"K{i}", f"buffer_load_dwordx4 {slot(i)}, v3, {K}, {so} offen offset:{off}{KVF}")
    def ldV(i):
        pace()
        so, off = kvoff(i); issue(f"V{i}", f"buffer_load_dwordx4 {slot(vslot[i])}, v3, {V}, {so} offen offset:{off}{KVF}")
        if i + 1 == wo_at: a(f"ds_write_b32 v32, v33 offset:{LVF}")
    masks(M, 30, 31)
    for T in range(8): a(f"v_mov_b32 v{S+T}, 0")
    a("v_lshlrev_b32 v28, 4, v2")
    a("s_lshl_b32 s56, s6, 7"); a("s_lshl_b32 s57, s7, 4"); a("s_add_u32 s56, s56, s57"); a(f"s_add_u32 s56, s56, {MLPUB}")
    rowaddr(30, 31, 768, "s7")
    a("s_lshl_b32 s57, s5, 5"); a("s_lshl_b32 s58, s7, 2"); a("s_add_u32 s57, s57, s58"); a("v_mov_b32 v31, s57")
    a("v_mov_b32 v32, s58"); a("v_mov_b32 v33, 1")
    if o.kprio: a(f"s_setprio {o.kprio}")
    a("s_waitcnt lgkmcnt(0)")
    if o.tlb & 1:
        a("s_mov_b64 exec, 1")
        a(f"buffer_load_dword v166, v29, {V}, s52 offen")
        a("s_mov_b64 exec, -1")
    for i in range(24):
        if i == o.pre:
            a("s_barrier")
            stamp(1)
            if o.pace and not o.pstart:
                a("s_memrealtime s[62:63]")
                a(f"s_mul_i32 s59, s7, {o.pstag}")
        throttle(D); ldK(i)
        if o.pace and i == o.pn0 - 1:
            a("s_waitcnt lgkmcnt(0)"); a("s_add_u32 s62, s62, s59")
    if o.kgate: a(f"ds_write_b32 v32, v33 offset:{LKF}")
    if o.kprio != o.vprio: a(f"s_setprio {o.vprio}")
    def kgate():
        a("v_lshlrev_b32 v35, 2, v2")
        ldsspin("L_kg", [f"ds_read_b32 v34, v35 offset:{LKF}"], 34, 2)
    if o.kgate == 1: kgate()
    for i in range(nv1): throttle(D); ldV(i)
    stamp(2)
    ldsspin("L_sq", [f"ds_read_b64 v[34:35], v29 offset:{LQF}"] + [f"ds_read_b128 v[{Q+4*k}:{Q+4*k+3}], v28 offset:{LQ+128*k}" for k in range(3)], 34, 2)
    stamp(3)
    nextv = nv1
    def dppstep(T, st): a(f"v_add_f32_dpp v{S+T}, v{S+T}, v{S+T} {DP[st]} row_mask:0xf bank_mask:0xf")
    known = max(0, len(ops) - D)
    for T in range(8):
        if ops.index(f"K{3*T+2}") >= known: wait_for(f"K{3*T+2}")
        for k in range(3):
            for r in range(4):
                a(f"v_dot2c_f32_bf16 v{S+T}, v{POOL+4*(3*T+k)+r}, v{Q+4*k+r}")
            if T > 0: dppstep(T - 1, k)
        if T % qk_every == qk_every - 1 and nextv < 24 and (vslot[nextv] >= 24 or vslot[nextv] < 3 * (T + 1)):
            ldV(nextv); nextv += 1
    for st in range(3): dppstep(7, st)
    for T in range(0, 8, 2): a(f"v_cvt_pk_bf16_f32 v{Q+T}, v{S+T}, v{S+T+1}")
    for T in range(0, 8, 2):
        a(f"v_lshlrev_b32 v{S+T}, 16, v{Q+T}"); a(f"v_and_b32 v{S+T+1}, 0xffff0000, v{Q+T}")
    for T in range(8): a(f"v_mul_f32 v{S+T}, 0x3d93cd3a, v{S+T}")
    for T in range(0, 8, 2): a(f"v_cvt_pk_bf16_f32 v{Q+T}, v{S+T}, v{S+T+1}")
    for T in range(0, 8, 2):
        a(f"v_lshlrev_b32 v{S+T}, 16, v{Q+T}"); a(f"v_and_b32 v{S+T+1}, 0xffff0000, v{Q+T}")
    a(f"v_max3_f32 v{Q}, v{S}, v{S+1}, v{S+2}"); a(f"v_max3_f32 v{Q+1}, v{S+3}, v{S+4}, v{S+5}")
    a(f"v_max3_f32 v{Q}, v{Q}, v{S+6}, v{S+7}"); a(f"v_max_f32 v{Q}, v{Q}, v{Q+1}")
    wave_reduce("v_max_f32", Q, full=False)
    if qk_every <= 8: ldV(nextv); nextv += 1
    a(f"v_readlane_b32 s61, v{Q}, 63")
    for T in range(8): a(f"v_subrev_f32 v{S+T}, s61, v{S+T}")
    for T in range(8): a(f"v_mul_f32 v{S+T}, 0x3fb8aa3b, v{S+T}")
    for T in range(8): a(f"v_exp_f32 v{S+T}, v{S+T}")
    a(f"v_add_f32 v{Q+1}, v{S}, v{S+1}")
    for T in range(2, 8): a(f"v_add_f32 v{Q+1}, v{Q+1}, v{S+T}")
    a(f"v_mov_b32 v{Q+2}, v35")
    wave_reduce("v_add_f32", Q + 1, full=False)
    a("s_mov_b32 exec_lo, 0"); a("s_brev_b32 exec_hi, 1")
    if o.mlprio: a(f"s_setprio {o.mlprio}")
    issue("ML", f"buffer_store_dwordx3 v[{Q}:{Q+2}], v29, {WS}, s56 offen sc1")
    a(f"ds_write_b32 v32, v33 offset:{LMF}")
    a("s_mov_b64 exec, -1")
    if o.vprio or o.mlprio: a("s_setprio 0")
    stamp(4)
    if o.kgate == 2: kgate()
    while nextv < 24: throttle(D2); ldV(nextv); nextv += 1
    stamp(5)
    if o.spoll:
        a(f"v_readfirstlane_b32 s{TAG}, v35")
        a("s_lshl_b32 s59, s5, 1"); a("s_add_u32 s59, s59, s7")
        a("s_cmp_ge_u32 s7, 2"); a("s_cselect_b32 s59, 15, s59")
        a("s_mul_i32 s62, s59, 13"); a("s_lshr_b32 s62, s62, 6")
        a("s_lshl_b32 s55, s4, 13"); a("s_lshl_b32 s53, s62, 11"); a("s_add_u32 s55, s55, s53"); a(f"s_add_u32 s55, s55, {OPUB}")
        mktagbytes()
        a("v_lshlrev_b32 v3, 4, v0")
        a("s_lshl_b32 s53, s7, 8"); a("v_lshlrev_b32 v28, 2, v0"); a("v_add_u32 v28, s53, v28")
    ldsspin("L_ss", [f"ds_read_b32 v35, v29 offset:{LSF}", f"ds_read_b32 v34, v31 offset:{LSC}"], 35, 2)
    stamp(6)
    for T in range(8): a(f"v_mul_f32 v{S+T}, v{S+T}, v34")
    for T in range(8): a(f"v_cvt_pk_bf16_f32 v{S+T}, v{S+T}, v{S+T}")
    AT = [POOL + 4 * 23, POOL + 4 * 22]
    known = max(0, len(ops) - D2)
    for i in range(24):
        T, k = divmod(i, 3)
        at = AT[T & 1]
        if k == 0:
            for r in range(4): a(f"v_and_b32 v{at+r}, v{S+T}, v{M+r}")
        if ops.index(f"V{i}") >= known: wait_for(f"V{i}")
        c = f"v[{ACC+4*k}:{ACC+4*k+3}]"
        a(f"v_mfma_f32_16x16x32_bf16 {c}, v[{at}:{at+3}], {slot(vslot[i])}, " + ("0" if T == 0 else c))
    rowexec()
    for k in range(3): a(f"ds_write_b128 v30, v[{ACC+4*k}:{ACC+4*k+3}] offset:{LO+256*k}")
    if o.spoll:
        a("s_cmp_lt_u32 s59, 15"); a("s_cbranch_scc1 L_sp")
    a("s_waitcnt lgkmcnt(0)")
    if stamps:
        stamp(7)
        a("s_barrier")
        a("s_branch L_fin")
    if o.spoll:
        a("s_endpgm")
        a("L_sp:")
        a("s_mov_b64 exec, -1")
        a("s_waitcnt lgkmcnt(0)")
        stamp(7)
        a("s_barrier")
        opoll("v3")
        stamp(8)
        oreduce()
        a(f"ds_write_b32 v28, v12 offset:{LP1}")
        a(f"ds_write_b32 v32, v33 offset:{LOF}")
        a("s_waitcnt lgkmcnt(0)")
        if stamps: a("s_branch L_fin")
    a("L_last:")
    a("s_endpgm")
    a.raw('.section .rodata,"a"'); a.raw(".p2align 6"); a.raw(f".amdhsa_kernel {KN}")
    a.raw("  .amdhsa_next_free_vgpr 168"); a.raw(f"  .amdhsa_next_free_sgpr {96 if stamps else 70}"); a.raw("  .amdhsa_accum_offset 168")
    a.raw("  .amdhsa_group_segment_fixed_size 0"); a.raw("  .amdhsa_kernarg_size 96"); a.raw("  .amdhsa_user_sgpr_count 2")
    a.raw("  .amdhsa_user_sgpr_kernarg_segment_ptr 1"); a.raw("  .amdhsa_system_sgpr_workgroup_id_x 1"); a.raw(".end_amdhsa_kernel")
    return a.finish()

if __name__ == "__main__":
    ap = argparse.ArgumentParser()
    ap.add_argument("out")
    for f in ("nont", "nontw", "stamps", "warm"): ap.add_argument("--" + f, action="store_true")
    for n, d in dict(D=60, D2=60, nv1=4, qk=9, woat=24, kprio=2, vprio=1, mlprio=0, pre=0,
                     slq0=0, nq=1, dq=32, slq=8, slml0=0, nml=1, dml=32, slml=8, slb=4, sly0=0, ny=1, dy=8, sly=0, kgate=0,
                     slg0=64, no=1, do=8, slo=0, tlb=0, earlyb=0, pace=0, pn0=4, pg=1, poff=0, pstag=4, pstart=0, G=1, dnt=0, dnfirst=0, wot=0, wop=0, wog=1, slo0=0, bprio=3, gt=0, dnlate=0, wolst=0, spoll=0).items():
        ap.add_argument("--" + n, type=int, default=d)
    ap.add_argument("--bar", default="C")
    x = ap.parse_args()
    open(x.out, "w").write(gen(x))
```
